```python
import torch

def _softmax(x, axis=-1):
    return torch.softmax(x, dim=axis)
def _gelu(x):
    return torch.nn.functional.gelu(x, approximate="tanh")
def _silu(x):
    return torch.nn.functional.silu(x)
def _sigmoid(x):
    return torch.sigmoid(x)
def _layernorm(x, axis=-1, eps=1e-5):
    m = x.mean(dim=axis, keepdim=True)
    v = x.var(dim=axis, keepdim=True, unbiased=False)
    return (x - m) / torch.sqrt(v + eps)
def _scatter_add(tgt, idx, src, axis=0):
    return tgt.clone().index_add_(axis, idx, src)
def _segment_sum(src, seg, n):
    out = torch.zeros((n,) + src.shape[1:], dtype=src.dtype)
    return out.index_add_(0, seg, src)
def _pad(x, pw):
    flat = tuple(v for pair in reversed(pw) for v in pair)
    return torch.nn.functional.pad(x, flat)

kernel_name = 'parallel_sum__sliding_block_cached__mixer_channel_mlp__decode'

def setup_inputs():

    _w = (lambda a: (lambda t: t.to(torch.bfloat16) if t.is_floating_point() else t)(torch.as_tensor(a)))
    def _A_setup():
        B, Sq, D = 1, 1, 576
        Hq, Hkv, Sk, Dh = 32, 16, 16384, 128
        assert Hq % Hkv == 0, (Hq, Hkv)
        return {
            "x": _w((lambda *s: torch.randn(*s, dtype=torch.bfloat16) * 0.05)(B, Sq, D)),
            "k_cache": _w((lambda *s: torch.randn(*s, dtype=torch.bfloat16) * 3.2)(B, Hkv, Sk, Dh)),
            "v_cache": _w((lambda *s: torch.randn(*s, dtype=torch.bfloat16) * 0.4)(B, Hkv, Sk, Dh)),
            "wq": _w((lambda *s: torch.randn(*s, dtype=torch.bfloat16) * 3.2)(D, Hq * Dh) * (D ** -0.5)),
            "wo": _w((lambda *s: torch.randn(*s, dtype=torch.bfloat16) * 0.4)(Hq * Dh, D) * ((Hq * Dh) ** -0.5)),
        }
    _A_in = _A_setup()

    def _B_setup():
        B, S, D, F = 1, 1, 576, 4608
        return {
            "x": _w((lambda *s: torch.randn(*s, dtype=torch.bfloat16) * 0.05)(B, S, D)),
            "w1": _w((lambda *s: torch.randn(*s, dtype=torch.bfloat16) * 3.2)(D, F) * (D ** -0.5)),
            "b1": _w((lambda *s: torch.randn(*s, dtype=torch.bfloat16) * 1.6)(F)),
            "w2": _w((lambda *s: torch.randn(*s, dtype=torch.bfloat16) * 0.1)(F, D) * (F ** -0.5)),
            "b2": _w((lambda *s: torch.randn(*s, dtype=torch.bfloat16) * 0.1)(D)),
        }
    _B_in = _B_setup()

    return {
        "A_x": _A_in["x"],
        "A_k_cache": _A_in["k_cache"],
        "A_v_cache": _A_in["v_cache"],
        "A_wq": _A_in["wq"],
        "A_wo": _A_in["wo"],
        "B_x": _B_in["x"],
        "B_w1": _B_in["w1"],
        "B_b1": _B_in["b1"],
        "B_w2": _B_in["w2"],
        "B_b2": _B_in["b2"],
    }

def reference(A_x, A_k_cache, A_v_cache, A_wq, A_wo, B_x, B_w1, B_b1, B_w2, B_b2):
    def _A_ref(x, k_cache, v_cache, wq, wo):
        B, Sq, D = x.shape
        Hq, Dh = 32, 128
        Hkv, Sk = k_cache.shape[1], k_cache.shape[2]
        W = min(4096, max(256, Sk // 4))
        rep = Hq // Hkv
        q = (lambda x, *d: x.permute(*d))((x @ wq).reshape(B, Sq, Hq, Dh), 0, 2, 1, 3)
        k = (lambda x, n, axis: torch.repeat_interleave(x, n, dim=axis))(k_cache[:, :, Sk - W:, :], rep, axis=1)
        v = (lambda x, n, axis: torch.repeat_interleave(x, n, dim=axis))(v_cache[:, :, Sk - W:, :], rep, axis=1)
        scores = torch.einsum("bhqd,bhkd->bhqk", q, k) * (Dh ** -0.5)
        p = _softmax(scores, axis=-1)
        o = torch.einsum("bhqk,bhkd->bhqd", p, v)
        return (lambda x, *d: x.permute(*d))(o, 0, 2, 1, 3).reshape(B, Sq, Hq * Dh) @ wo

    def _B_ref(x, w1, b1, w2, b2):
        y = _layernorm(x, axis=-1)
        h = _gelu(torch.einsum("bsd,df->bsf", y, w1) + b1)
        return torch.einsum("bsf,fd->bsd", h, w2) + b2

    x = A_x
    xn = _layernorm(x, axis=-1)
    return x + _A_ref(xn, A_k_cache, A_v_cache, A_wq, A_wo) + _B_ref(xn, B_w1, B_b1, B_w2, B_b2)
```

```python
KN="parallel_sum__sliding_block_cached__mixer_channel_mlp__decode_kernel"
HEADER=open("parallel_sum__sliding_block_cached__mixer_channel_mlp__decode.s.ref").read().split("; @launch")[0]
class Asm:
    def __init__(self): self.l=[]
    def __call__(self,s):
        for line in s.strip("\n").split("\n"):
            self.l.append("    "+line.strip() if not line.strip().endswith(":") else line.strip())
    def label(self,n): self.l.append(n+":")
    def text(self): return "\n".join(self.l)+"\n"
def wrap(body, grid, block, lds, vgpr, sgpr=96, accum=None, denorm=None):
    if accum is None: accum=(vgpr+3)//4*4
    extra=""
    if denorm is not None:
        extra=f"  .amdhsa_float_denorm_mode_32 {denorm}\n"
    return (HEADER+f"; @launch grid=({grid},1,1) block=({block},1,1) lds={lds}\n"
      +'.amdgcn_target "amdgcn-amd-amdhsa--gfx950"\n.text\n'
      +f".globl {KN}\n.p2align 8\n.type {KN},@function\n{KN}:\n"+body
      +'.section .rodata,"a"\n.p2align 6\n'
      +f".amdhsa_kernel {KN}\n  .amdhsa_next_free_vgpr {vgpr}\n  .amdhsa_next_free_sgpr {sgpr}\n  .amdhsa_accum_offset {accum}\n"
      +"  .amdhsa_group_segment_fixed_size 0\n  .amdhsa_kernarg_size 104\n  .amdhsa_user_sgpr_count 2\n  .amdhsa_user_sgpr_kernarg_segment_ptr 1\n  .amdhsa_system_sgpr_workgroup_id_x 1\n"
      +extra+".end_amdhsa_kernel\n")
```

```python
import sys, struct
from common import *
import hazard
from build import build

def f32(x): return "0x%08x" % struct.unpack("<I", struct.pack("<f", x))[0]

QBOX=0x10000; H1BOX=0x20000; HBOX=0xA0000; H2BOX=0x130000; STAMP=0x8000000
NRED=144
C_Y=4; C_Q=8; C_H=16; C_COEF=20; C_PUB=28; C_HP=0x20; C_ST=0x24; C_OP=0x28; ZERO=0x30; C_WI=0x2c
KT=0x40; K_L=0x50; K_O=0x60; VT=0x70; KH=0x74; ML=0x80
OC=0x200; HC=0x240; LQ=0x400; XN=0x600; YL=0xF00; PL=0x1800; OP=0x2000; LDS_SIZE=0x3800
LOG2E=1.4426950408889634
DPPM="row_mask:0xf bank_mask:0xf"
NULL="0x80000000"
B0="src0_sel:BYTE_0 src1_sel:DWORD"
NW=14

def gen(name, stamps=False, lim_lds=0x4000, lim_g=0x2000, wk=4, wv=4, ww=6, ww1=3, late=True, kt=15, kh=8, khn=4, vt=15, gate=4,
        ns=4, ns1=2, hfew=8, h2few=8, warm=2, outsc1=True, wq_win=0, xtra=1, rot=True, wi=None, win_=3, stg=None):
    a=Asm()
    uid=[0]
    def L(p):
        uid[0]+=1; return f"L_{p}_{uid[0]}"
    class St:
        def __init__(s): s.n=1
        def at(s):
            if not stamps: return
            k=s.n; s.n+=1; assert k<8
            a(f"s_memrealtime s[{80+2*k}:{81+2*k}]")
        def flush(s,n=None):
            if not stamps: return
            if n is None: n=s.n
            a(f"""
            s_mov_b64 s[76:77], s[32:33]
            s_mov_b32 s78, 0x10000000
            s_mov_b32 s79, 0x20000
            s_lshl_b32 s75, s2, 10
            s_add_u32 s75, s75, s74
            s_add_u32 s75, s75, {STAMP}
            s_mov_b64 exec, 1
            s_waitcnt lgkmcnt(0)
            """)
            for k in range(n):
                a(f"v_mov_b32 v2, s{80+2*k}\nv_mov_b32 v3, s{81+2*k}\nbuffer_store_dwordx2 v[2:3], off, s[76:79], s75 offset:{k*8}\ns_nop 1")
    def wait_flag(off, target, vt_, va, extra="", cmp="ne"):
        lp=L("w"); dn=L("d")
        a(f"""
        s_movk_i32 s34, {lim_lds}
        {lp}:
        ds_read_b32 v{vt_}, v{va} offset:{off}
        {extra}
        s_waitcnt lgkmcnt(0)
        v_cmp_{cmp}_u32 vcc, {target}, v{vt_}
        s_sub_u32 s34, s34, 1
        s_cbranch_scc1 {dn}
        s_cbranch_vccnz {lp}
        {dn}:
        """.replace("\n        \n","\n"))
    def tagcode():
        return ["s_mul_i32 s72, s73, 1664525","s_add_u32 s72, s72, 1013904223","s_or_b32 s72, s72, 0x01010101","s_xor_b32 s72, s72, s73",
                "s_and_b32 s68, s72, 0xff","s_bfe_u32 s69, s72, 0x80008","s_bfe_u32 s70, s72, 0x80010","s_lshr_b32 s71, s72, 24"]
    def wave_sum(v, s):
        for r in (8,4,2,1): a(f"v_add_f32_dpp v{v}, v{v}, v{v} row_ror:{r} {DPPM}")
        a(f"v_add_f32_dpp v{v}, v{v}, v{v} row_bcast:15 row_mask:0xa bank_mask:0xf")
        a(f"v_add_f32_dpp v{v}, v{v}, v{v} row_bcast:31 row_mask:0xc bank_mask:0xf")
        a(f"v_readlane_b32 s{s}, v{v}, 63")
    def masks(base, t):
        a(f"""
        v_and_b32 v{t}, 1, v1
        v_mov_b32 v{t+1}, 0xffff
        v_lshlrev_b32 v{t}, 4, v{t}
        v_lshlrev_b32 v{t+1}, v{t}, v{t+1}
        v_bfe_u32 v{t+2}, v1, 1, 2
        """)
        for d in range(4):
            a(f"v_cmp_eq_u32 vcc, {d}, v{t+2}\nv_cndmask_b32 v{base+d}, 0, v{t+1}, vcc")
    def mfma(acc, A_, B_, first):
        a(f"v_mfma_f32_16x16x32_bf16 v[{acc}:{acc+3}], v[{A_}:{A_+3}], v[{B_}:{B_+3}], {'0' if first else f'v[{acc}:{acc+3}]'}")
    def gather(nl, NS, D, F, T, P, load, few, dn):
        slow=L("gs"); s0=L("g0")
        a(f"s_movk_i32 s34, {lim_g}")
        if few is not None or NS==1: a(f"{slow}:\ns_waitcnt vmcnt(0)")
        a(f"{s0}:")
        for s in range(NS):
            for k in range(nl):
                d=D+4*(s*nl+k); f=F+4*k; p=f"s[{P+2*k}:{P+2*k+1}]"
                if NS>1: a(f"s_waitcnt vmcnt({nl*NS-1})")
                a(f"s_mov_b64 exec, {p}")
                for r in range(4): a(f"v_xor_b32 v{f+r}, s{68+r}, v{d+r}")
                a(f"""
                v_or3_b32 v{T}, v{f}, v{f+1}, v{f+2}
                v_or_b32 v{T}, v{T}, v{f+3}
                v_cmp_ne_u32_sdwa {p}, v{T}, 0 {B0}
                """)
                if nl==1:
                    a(f"s_cmp_eq_u64 {p}, 0\ns_cbranch_scc1 {dn}\ns_mov_b64 exec, {p}")
                else:
                    a(f"s_or_b64 exec, {p}, 1")
                a(load(k,d))
            if nl>1:
                assert nl==4
                a(f"""
                s_or_b64 s[{P+8}:{P+9}], s[{P}:{P+1}], s[{P+2}:{P+3}]
                s_or_b64 s[{P+10}:{P+11}], s[{P+4}:{P+5}], s[{P+6}:{P+7}]
                s_or_b64 s[{P+8}:{P+9}], s[{P+8}:{P+9}], s[{P+10}:{P+11}]
                s_cbranch_scc0 {dn}
                """)
            if s==0:
                a(f"s_sub_u32 s34, s34, 1\ns_cbranch_scc1 {dn}")
                if NS==1: a(f"s_branch {slow}")
                elif few is not None:
                    a(f"s_bcnt1_i32_b64 s35, s[{P+8}:{P+9}]\ns_cmp_gt_u32 s35, {few}\ns_cbranch_scc1 {slow}")
        if NS>1: a(f"s_branch {s0}")
        a(f"{dn}:\ns_mov_b64 exec, -1")
    class VM:
        def __init__(s): s.q=[]; s.done=-1
        def issue(s,tag,text):
            a(text); s.q.append(tag)
            if tag==wi: a(f"s_mov_b64 exec, 1\nds_add_u32 v8, v10 offset:{C_WI}\ns_mov_b64 exec, -1")
        def wait(s,tag):
            i=s.q.index(tag)
            if i>s.done:
                a(f"s_waitcnt vmcnt({len(s.q)-1-i})"); s.done=i

    stS=St(); stK=St(); stV=St(); stW=St(); stR=St(); stQ=St()
    if stamps: a("s_memrealtime s[80:81]")
    a(f"""
    s_cmpk_lt_u32 s2, 0x100
    s_cbranch_scc0 L_end
    s_load_dwordx16 s[8:23], s[0:1], 0
    s_load_dwordx8 s[24:31], s[0:1], 64
    s_load_dwordx2 s[32:33], s[0:1], 96
    v_readfirstlane_b32 s3, v0
    v_and_b32 v1, 63, v0
    v_lshlrev_b32 v2, 4, v0
    v_mov_b64 v[4:5], 0
    v_mov_b64 v[6:7], 0
    s_and_b32 s6, s2, 7
    s_bfe_u32 s7, s2, 0x10003
    """)
    if stamps: a("s_and_b32 s74, s3, 0x3c0")
    a(f"""
    s_lshr_b32 s3, s3, 6
    ds_write_b128 v2, v[4:7]
    s_lshl1_add_u32 s4, s6, s7
    s_lshr_b32 s5, s2, 4
    s_lshr_b32 s7, s2, 3
    s_mov_b32 s39, 0x20000
    v_lshlrev_b32 v2, 4, v1
    s_sub_u32 s35, s3, 1
    s_cbranch_scc1 L_Qstub
    s_and_b32 s60, s35, 3
    s_lshl_b32 s56, s4, 8
    s_lshl2_add_u32 s57, s5, s60
    s_add_u32 s56, s56, s57
    s_add_u32 s56, s56, 192
    s_add_u32 s61, s60, s5
    s_and_b32 s61, s61, {3 if rot else 0}
    s_lshl2_add_u32 s56, s56, s61
    s_lshl_b32 s56, s56, 12
    s_mov_b32 s38, 0x4000000
    s_cmp_lt_u32 s35, 4
    s_cbranch_scc0 L_notK
    """)
    KR=16
    def kvload(i): return f"buffer_load_dwordx4 v[{KR+4*i}:{KR+4*i+3}], v2, s[36:39], s{56+(i>>2)} offen offset:{(i&3)*1024} nt"
    a(f"""
    s_setprio 2
    s_xor_b32 s57, s56, 4096
    s_waitcnt lgkmcnt(0)
    s_mov_b64 s[36:37], s[10:11]
    """)
    stK.at()
    for i in range(wk): a(kvload(i))
    a("s_branch L_Kbody")
    a("L_Qstub:\ns_setprio 3")
    if warm:
        a(f"""
        s_getpc_b64 s[44:45]
        L_pc:
        s_mov_b32 s46, L_codeend-L_pc
        s_mov_b32 s47, 0x20000
        v_lshlrev_b32 v5, 7, v1
        """)
        for i in range(warm):
            a(f"s_movk_i32 s48, {8192*i}\nbuffer_load_dword v{100+i}, v5, s[44:47], s48 offen")
    a(f"""
    v_lshrrev_b32 v3, 3, v1
    v_and_b32 v4, 7, v1
    v_lshlrev_b32 v127, 1, v1
    s_movk_i32 s42, 1152
    s_mov_b32 s43, 0x20000
    v_lshlrev_b32 v4, 4, v4
    v_lshl_or_b32 v5, v3, 17, v4
    v_lshl_or_b32 v6, v3, 14, v4
    s_lshr_b32 s60, s5, 2
    s_and_b32 s61, s5, 3
    s_mul_i32 s44, s60, {144*8192}
    s_lshl_b32 s45, s4, 9
    s_add_u32 s44, s44, s45
    s_lshl_b32 s45, s61, 7
    s_add_u32 s44, s44, s45
    """)
    for i in range(1,14): a(f"s_add_u32 s{44+i}, s44, {8192*i}")
    a(f"""
    s_add_u32 s62, s44, {8192*14}
    s_add_u32 s63, s44, {8192*15}
    s_add_u32 s64, s44, {8192*128}
    s_add_u32 s65, s44, {8192*129}
    s_mov_b32 s38, 4718592
    s_waitcnt lgkmcnt(0)
    s_mov_b64 s[40:41], s[8:9]
    s_mov_b64 s[36:37], s[14:15]
    """)
    stQ.at()
    a("""
    buffer_load_dwordx4 v[120:123], v2, s[40:43], 0 offen
    buffer_load_ushort v124, v127, s[40:43], 0 offen offset:1024
    """)
    for i in range(18):
        so=44+i if i<14 else 62+(i-14)
        a(f"buffer_load_dwordx4 v[{16+4*i}:{16+4*i+3}], v{5 if i<16 else 6}, s[36:39], s{so} offen nt")
    a(f"""
    s_load_dword s73, s[32:33], 0
    s_branch L_Qbody
    """)
    a(f"""
    L_notK:
    s_mov_b32 s43, 0x20000
    s_cmp_lt_u32 s3, 10
    s_cbranch_scc1 L_notV
    s_waitcnt lgkmcnt(0)
    s_mov_b64 s[36:37], s[12:13]
    """)
    a(kvload(0))
    a("s_branch L_Vbody")
    T1=16; M1=40; M2=44; WOR=48; T2=72; AO=96; ACC=108; DM=120; MKW=124; CF=12; TM=96
    a(f"""
    L_notV:
    v_lshrrev_b32 v3, 3, v1
    v_and_b32 v4, 7, v1
    s_cmp_lt_u32 s3, 7
    s_cbranch_scc1 L_notW
    v_lshlrev_b32 v4, 4, v4
    v_lshrrev_b32 v12, 5, v1
    v_bfe_u32 v13, v1, 3, 1
    v_bfe_u32 v14, v1, 4, 1
    v_lshl_or_b32 v7, v12, 7, v4
    v_lshl_or_b32 v7, v13, 8, v7
    v_mov_b32 v15, {NULL}
    v_cmp_gt_u32 vcc, 0x180, v7
    s_sub_u32 s3, s3, 7
    s_mul_i32 s60, s3, 384
    v_cndmask_b32 v7, v15, v7, vcc
    v_mul_u32_u24 v6, 9216, v14
    v_mul_u32_u24 v8, 1152, v14
    v_mul_u32_u24 v5, {2*9216}, v3
    v_mul_u32_u24 v9, 2304, v3
    v_add_u32 v6, v6, v7
    v_add_u32 v8, v8, v7
    v_add_u32 v5, v5, v4
    v_add_u32 v9, v9, v4
    s_mul_i32 s56, s7, {18*9216}
    s_mul_i32 s57, s6, 1152
    s_add_u32 s56, s56, s57
    s_add_u32 s56, s56, s60
    s_add_u32 s57, s56, 9216
    s_add_u32 s59, s56, {16*9216}
    s_lshl_b32 s64, s6, 5
    s_add_u32 s62, s64, s7
    s_mul_i32 s64, s62, {18*1152}
    s_add_u32 s64, s64, s60
    s_add_u32 s66, s64, {16*1152}
    s_lshl_b32 s67, s4, 4
    s_add_u32 s67, s67, s5
    s_mul_i32 s67, s67, 18432
    s_add_u32 s67, s67, s60
    s_mov_b32 s38, 5308416
    s_mov_b32 s46, 5308416
    s_mov_b32 s47, 0x20000
    s_mov_b32 s50, 4718592
    s_mov_b32 s51, 0x20000
    s_waitcnt lgkmcnt(0)
    s_mov_b64 s[36:37], s[20:21]
    s_mov_b64 s[44:45], s[24:25]
    s_mov_b64 s[48:49], s[16:17]
    s_load_dword s73, s[32:33], 0
    """)
    def w1load(k): gi,c=divmod(k,3); r=T1+4*k; return f"buffer_load_dwordx4 v[{r}:{r+3}], v5, s[36:39], s{56+gi} offen offset:{128*c} nt"
    def w2load(k): gi,c=divmod(k,3); r=T2+4*k; return f"buffer_load_dwordx4 v[{r}:{r+3}], v9, s[44:47], s64 offen offset:{1152*gi+128*c} nt"
    def woload(k): gi,c=divmod(k,3); r=WOR+4*k; return f"buffer_load_dwordx4 v[{r}:{r+3}], v9, s[48:51], s67 offen offset:{1152*gi+128*c} nt"
    vw=VM()
    vw.issue("m1",f"buffer_load_dwordx4 v[{M1}:{M1+3}], v6, s[36:39], s59 offen nt")
    vw.issue("m2",f"buffer_load_dwordx4 v[{M2}:{M2+3}], v8, s[44:47], s66 offen nt")
    vw.issue("wo0",woload(0))
    a("s_branch L_Wbody")
    a(f"""
    L_notW:
    s_cmp_eq_u32 s3, 6
    s_cbranch_scc1 L_Rbody
    s_setprio 3
    v_lshlrev_b32 v127, 1, v1
    s_movk_i32 s42, 1152
    s_waitcnt lgkmcnt(0)
    s_mov_b64 s[40:41], s[8:9]
    {"s_memrealtime s[82:83]" if stamps else "s_nop 0"}
    buffer_load_dwordx4 v[120:123], v2, s[40:43], 0 offen
    buffer_load_ushort v124, v127, s[40:43], 0 offen offset:1024
    s_load_dword s73, s[32:33], 0
    v_mov_b32 v11, {NULL}
    s_barrier
    s_mov_b64 s[40:41], s[32:33]
    s_mov_b32 s42, 0x10000000
    v_mov_b32 v125, {f32(1.0/576)}
    v_lshlrev_b32 v126, 5, v1
    v_lshlrev_b32 v127, 2, v1
    s_waitcnt vmcnt(0)
    s_branch L_LN0
    """)
    a(f"""
    L_Kbody:
    s_xor_b32 s58, s56, 8192
    s_xor_b32 s59, s56, 12288
    s_lshl_b32 s61, s60, 2
    v_mov_b32 v10, s61
    v_mov_b32 v11, 1
    v_mov_b32 v6, 0
    s_barrier
    """)
    for i in range(wk,16):
        a(f"s_waitcnt vmcnt({wk-1})")
        a(kvload(i))
        if i==kh: a(f"s_mov_b64 exec, 1\nds_add_u32 v6, v11 offset:{KH}\ns_mov_b64 exec, -1")
        if i==kt: a(f"ds_write_b32 v10, v11 offset:{KT}")
    stK.at()
    a(f"""
    s_setprio 0
    v_and_b32 v7, 15, v1
    v_lshlrev_b32 v7, 4, v7
    v_lshrrev_b32 v14, 2, v1
    s_lshl_b32 s61, s60, 9
    v_lshl_add_u32 v14, v14, 5, s61
    v_and_b32 v15, 8, v1
    s_lshl_b32 s61, s60, 3
    v_lshl_add_u32 v15, v15, 2, s61
    s_mov_b32 s62, 0x11111111
    s_mov_b32 s63, 0x11111111
    """)
    wait_flag(C_Q,1,8,6,f"ds_read_b128 v[80:83], v7 offset:{LQ}\nds_read_b128 v[84:87], v7 offset:{LQ+256}")
    stK.at()
    a("s_setprio 1")
    SA=88; SB=104
    def step1(g):
        for i in range(4*g,4*g+4): a(f"v_add_f32_dpp v{SA+i}, v{SA+i}, v{SA+i} row_ror:8 row_mask:0xf bank_mask:0x3")
        for i in range(4*g,4*g+4): a(f"v_add_f32_dpp v{SA+i}, v{SB+i}, v{SB+i} row_ror:8 row_mask:0xf bank_mask:0xc")
    for g in range(4):
        if 4*g+3>15-wk: a(f"s_waitcnt vmcnt({12-4*g})")
        if g==3: stK.at()
        for c in range(4):
            for i in range(4*g,4*g+4):
                for (S,q) in ((SA,80),(SB,84)):
                    if c==0: a(f"v_dot2_f32_bf16 v{S+i}, v{KR+4*i}, v{q}, 0")
                    else: a(f"v_dot2c_f32_bf16 v{S+i}, v{KR+4*i+c}, v{q+c}")
            if c==0 and g>0: step1(g-1)
    step1(3)
    for r in range(8): a(f"v_add_f32_dpp v{SA+r}, v{SA+r}, v{SA+r} row_half_mirror row_mask:0xf bank_mask:0x5")
    for r in range(8): a(f"v_add_f32_dpp v{SA+r}, v{SA+8+r}, v{SA+8+r} row_half_mirror row_mask:0xf bank_mask:0xa")
    for pat in ("quad_perm:[1,0,3,2]","quad_perm:[2,3,0,1]"):
        for i in range(8): a(f"v_add_f32_dpp v{SA+i}, v{SA+i}, v{SA+i} {pat} {DPPM}")
    for i in range(8): a(f"v_cvt_pk_bf16_f32 v{SA+i}, 0, v{SA+i}")
    for i in range(8): a(f"v_mul_f32 v{SA+i}, 0x3db504f3, v{SA+i}")
    for i in range(8): a(f"v_cvt_pk_bf16_f32 v{SA+i}, 0, v{SA+i}")
    def rows(op,v,t):
        a(f"""
        v_{op}_f32_dpp v{v}, v{v}, v{v} row_half_mirror {DPPM}
        v_mov_b32 v{t}, v{v}
        v_permlane32_swap_b32 v{v}, v{t}
        v_{op}_f32 v{v}, v{v}, v{t}
        v_mov_b32 v{t}, v{v}
        v_permlane16_swap_b32 v{v}, v{t}
        v_{op}_f32 v{v}, v{v}, v{t}
        """)
    a(f"""
    v_max3_f32 v12, v{SA}, v{SA+1}, v{SA+2}
    v_max3_f32 v13, v{SA+3}, v{SA+4}, v{SA+5}
    v_max3_f32 v12, v12, v{SA+6}, v{SA+7}
    v_max_f32 v12, v12, v13
    """)
    rows("max",12,13)
    for i in range(8): a(f"v_sub_f32 v{SA+i}, v{SA+i}, v12")
    for i in range(8): a(f"v_mul_f32 v{SA+i}, {f32(LOG2E)}, v{SA+i}")
    for i in range(8): a(f"v_exp_f32 v{SA+i}, v{SA+i}")
    a(f"""
    v_add_f32 v13, v{SA}, v{SA+1}
    v_add_f32 v3, v{SA+2}, v{SA+3}
    v_add_f32 v4, v{SA+4}, v{SA+5}
    v_add_f32 v5, v{SA+6}, v{SA+7}
    v_add_f32 v13, v13, v3
    v_add_f32 v4, v4, v5
    v_add_f32 v13, v13, v4
    """)
    for i in range(8): a(f"v_cvt_pk_bf16_f32 v{SA+i}, v{SA+i}, v{SA+i}")
    rows("add",13,3)
    a(f"""
    s_mov_b64 exec, s[62:63]
    ds_write_b128 v14, v[{SA}:{SA+3}] offset:{PL}
    ds_write_b128 v14, v[{SA+4}:{SA+7}] offset:{PL+16}
    ds_write_b64 v15, v[12:13] offset:{ML}
    ds_write_b32 v10, v11 offset:{K_L}
    """)
    stK.at()
    stK.flush()
    a("s_endpgm")
    MK=112; AC=116; PR=80; AT=96
    a(f"""
    L_Vbody:
    s_xor_b32 s57, s56, 4096
    s_xor_b32 s58, s56, 8192
    s_xor_b32 s59, s56, 12288
    s_lshl_b32 s61, s60, 2
    v_mov_b32 v10, s61
    v_mov_b32 v11, 1
    v_mov_b32 v6, 0
    v_lshrrev_b32 v14, 3, v1
    s_lshl_b32 s61, s60, 9
    v_lshl_add_u32 v14, v14, 6, s61
    s_lshl_b32 s61, s60, 10
    v_add_u32 v15, s61, v2
    """)
    masks(MK,3)
    a("s_barrier")
    wait_flag(KT,1,8,10)
    a("s_setprio 2")
    stV.at()
    for i in range(1,16):
        if i>wv: a(f"s_waitcnt vmcnt({wv-1})")
        a(kvload(i))
        if i==vt: a(f"s_mov_b64 exec, 1\nds_add_u32 v6, v11 offset:{VT}\ns_mov_b64 exec, -1")
    stV.at()
    wait_flag(K_L,1,8,10,"\n".join(f"ds_read_b128 v[{PR+4*i}:{PR+4*i+3}], v14 offset:{PL+16*i}" for i in range(4)))
    stV.at()
    nE=16-wv
    def aloc(t): return AT+4*(t&1) if t<nE else KR+4*(t-nE)
    for t in range(nE+1):
        if t<nE:
            for d in range(4): a(f"v_and_b32 v{aloc(t)+d}, v{PR+t}, v{MK+d}")
        if t>0: mfma(AC,aloc(t-1),KR+4*(t-1),t==1)
    for t in range(nE,16):
        for d in range(4): a(f"v_and_b32 v{aloc(t)+d}, v{PR+t}, v{MK+d}")
    a("s_setprio 3")
    for t in range(nE,16):
        a(f"s_waitcnt vmcnt({15-t})")
        if t==15: stV.at()
        mfma(AC,aloc(t),KR+4*t,False)
    a(f"ds_write_b128 v15, v[{AC}:{AC+3}] offset:{OP}\nds_write_b32 v10, v11 offset:{K_O}")
    stV.at()
    stV.flush()
    a("s_endpgm")

    a(f"""
    L_Qbody:
    s_barrier
    s_mul_i32 s62, s60, 576
    s_add_u32 s62, s62, {XN}
    v_lshl_add_u32 v7, v3, 6, s62
    v_lshl_add_u32 v8, v3, 3, s62
    v_and_b32 v11, 15, v1
    v_lshrrev_b32 v9, 4, v1
    v_lshlrev_b32 v11, 5, v11
    v_lshl_or_b32 v11, v9, 4, v11
    v_mov_b32 v10, 0xffffff00
    s_lshl_b32 s62, s4, 12
    s_lshl_b32 s63, s60, 10
    s_add_u32 s62, s62, s63
    s_lshl_b32 s63, s61, 8
    s_add_u32 s62, s62, s63
    s_add_u32 s62, s62, {QBOX}
    s_mov_b64 s[40:41], s[32:33]
    s_mov_b32 s42, 0x10000000
    s_mov_b32 s64, 0x00ff00ff
    s_mov_b32 s65, 0
    """)
    masks(12,4)
    a(f"""
    v_mov_b32 v125, {f32(1.0/576)}
    v_lshlrev_b32 v126, 5, v1
    v_lshlrev_b32 v127, 2, v1
    s_waitcnt vmcnt(18)
    L_LN0:
    """)
    if stamps: a("s_memrealtime s[84:85]"); stQ.n=3; stS.n=3
    E=88; DS=98; T=107
    for d in range(4):
        a(f"v_lshlrev_b32 v{E+2*d}, 16, v{120+d}\nv_and_b32 v{E+2*d+1}, 0xffff0000, v{120+d}")
    a(f"v_lshlrev_b32 v{E+8}, 16, v124")
    a("L_LN:")
    def layernorm(src, dst, t):
        a(f"""
        v_add_f32 v{t}, v{src}, v{src+1}
        v_add_f32 v{t+1}, v{src+2}, v{src+3}
        v_add_f32 v{t+2}, v{src+4}, v{src+5}
        v_add_f32 v{t+3}, v{src+6}, v{src+7}
        v_add_f32 v{t}, v{t}, v{src+8}
        v_add_f32 v{t+1}, v{t+1}, v{t+2}
        v_add_f32 v{t}, v{t}, v{t+3}
        v_add_f32 v{t}, v{t}, v{t+1}
        """)
        wave_sum(t,66)
        a(f"v_mul_f32 v{t+1}, s66, v125")
        for i in range(9): a(f"v_sub_f32 v{t+2+i}, v{src+i}, v{t+1}")
        a(f"v_mul_f32 v{t}, v{t+2}, v{t+2}\nv_mul_f32 v{t+11}, v{t+3}, v{t+3}")
        for i in range(2,9):
            a(f"v_fmac_f32 v{t+(11 if i&1 else 0)}, v{t+2+i}, v{t+2+i}")
        a(f"v_add_f32 v{t}, v{t}, v{t+11}")
        a(f"v_cvt_pk_bf16_f32 v{t+1}, 0, v{t+1}")
        red=[f"v_add_f32_dpp v{t}, v{t}, v{t} row_ror:{r} {DPPM}" for r in (8,4,2,1)]
        red+=[f"v_add_f32_dpp v{t}, v{t}, v{t} row_bcast:15 row_mask:0xa bank_mask:0xf", f"v_add_f32_dpp v{t}, v{t}, v{t} row_bcast:31 row_mask:0xc bank_mask:0xf"]
        oth=[f"v_sub_f32 v{t+2+i}, v{src+i}, v{t+1}" for i in range(9)]+[f"v_cvt_pk_bf16_f32 v{t+2+i}, 0, v{t+2+i}" for i in range(9)]
        for k in range(6):
            a(red[k]); a(oth[2*k]); a(oth[2*k+1])
        a(f"v_readlane_b32 s67, v{t}, 63")
        a(oth[12]); a(oth[13])
        a(f"""
        v_mul_f32 v{t}, s67, v125
        v_cvt_pk_bf16_f32 v{t}, 0, v{t}
        v_add_f32 v{t}, {f32(1e-5)}, v{t}
        v_cvt_pk_bf16_f32 v{t}, 0, v{t}
        v_sqrt_f32 v{t}, v{t}
        """)
        a(oth[14]); a(oth[15])
        a(f"""
        v_cvt_pk_bf16_f32 v{t}, 0, v{t}
        v_rcp_f32 v{t+1}, v{t}
        """)
        a(oth[16]); a(oth[17])
        for i in range(9): a(f"v_mul_f32 v{dst+i}, v{t+2+i}, v{t+1}")
        for i in range(9): a(f"v_fma_f32 v{t+2+i}, -v{dst+i}, v{t}, v{t+2+i}")
        for i in range(9): a(f"v_fmac_f32 v{dst+i}, v{t+2+i}, v{t+1}")
        for i in range(9): a(f"v_cvt_pk_bf16_f32 v{dst+i}, v{dst+i}, v{dst+i}")
    layernorm(E,DS,T)
    a(f"""
    s_cmp_eq_u32 s3, 5
    s_cbranch_scc1 L_S1
    ds_write_b128 v126, v[{DS}:{DS+3}] offset:{XN}
    ds_write_b128 v126, v[{DS+4}:{DS+7}] offset:{XN+16}
    ds_write_b32 v127, v{DS+8} offset:{XN+2048}
    s_cmp_lg_u32 s3, 0
    s_cbranch_scc1 L_Sbody
    """)
    for i in range(4): a(f"ds_read_b128 v[{88+4*i}:{91+4*i}], v7 offset:{16*i}")
    a("ds_read_b64 v[104:105], v8 offset:512\ns_waitcnt lgkmcnt(0)")
    tc=tagcode()
    for i in range(19):
        if i<18:
            for d in range(4): a(f"v_and_b32 v{106+4*(i&1)+d}, v{88+i}, v{12+d}")
        if i>0:
            k=i-1
            a(f"s_waitcnt vmcnt({17-k})")
            mfma(116,106+4*(k&1),16+4*k,k==0)
    for t in tc[:4]: a(t)
    for i in range(4): a(f"v_mov_b32 v{106+i}, v{116+i}")
    a(tc[4])
    for i in range(4): a(f"v_permlane32_swap_b32 v{116+i}, v{106+i}")
    a(tc[5])
    for i in range(4): a(f"v_add_f32_dpp v{116+i}, v{106+i}, v{116+i} row_ror:8 {DPPM}")
    a(tc[6]); a(tc[7])
    for i in range(4): a(f"v_add_u32 v{116+i}, 0x80, v{116+i}")
    for i in range(4): a(f"v_and_or_b32 v{116+i}, v{116+i}, v10, s{68+i}")
    a(f"""
    s_mov_b64 exec, s[64:65]
    buffer_store_dwordx4 v[116:119], v11, s[40:43], s62 offen sc1
    s_mov_b64 exec, -1
    """)
    stQ.at()
    a(f"""
    s_setprio 0
    v_and_b32 v3, 15, v1
    v_lshrrev_b32 v4, 4, v1
    v_lshlrev_b32 v10, 6, v3
    v_lshl_or_b32 v10, v4, 4, v10
    v_lshlrev_b32 v11, 4, v3
    v_bfe_u32 v3, v1, 3, 1
    v_lshlrev_b32 v4, 4, v4
    v_lshl_or_b32 v12, v3, 2, v4
    v_mov_b32 v60, 0
    v_mov_b32 v61, 1
    s_lshl_b32 s56, s4, 4
    s_add_u32 s56, s56, s5
    s_lshl_b32 s56, s56, 11
    s_add_u32 s56, s56, {H1BOX}
    s_mov_b64 s[8:9], -1
    v_not_b32 v16, s68
    """)
    for s in range(ns1): a(f"v_not_b32 v{32+4*s}, s68")
    if stg: wait_flag(VT,stg,8,60,cmp="gt")
    else: wait_flag(C_ST,1,8,60)
    stQ.at()
    gather(1,1,16,20,5,8,lambda k,d: f"buffer_load_dwordx4 v[{d}:{d+3}], v11, s[40:43], s56 offen offset:1024 sc1",None,L("sd"))
    a(f"v_max_f32_dpp v22, v20, v20 row_ror:8 {DPPM}")
    for r in (4,2,1): a(f"v_max_f32_dpp v22, v22, v22 row_ror:{r} {DPPM}")
    a(f"""
    v_sub_f32 v20, v20, v22
    v_mul_f32 v20, {f32(LOG2E)}, v20
    v_exp_f32 v20, v20
    v_mul_f32 v21, v21, v20
    """)
    for r in (8,4,2,1): a(f"v_add_f32_dpp v21, v21, v21 row_ror:{r} {DPPM}")
    a(f"""
    v_rcp_f32 v21, v21
    s_mov_b64 s[8:9], -1
    """)
    stQ.at()
    if wi is not None: wait_flag(C_WI,win_,8,60,cmp="gt")
    else: wait_flag(C_OP,1,8,60)
    a("s_setprio 3")
    stQ.at()
    gather(1,ns1,32,24,5,8,lambda k,d: f"buffer_load_dwordx4 v[{d}:{d+3}], v10, s[40:43], s56 offen sc1",None,L("od"))
    a(f"""
    v_mul_f32 v24, v24, v20
    v_mul_f32 v26, v26, v20
    v_mul_f32 v25, v25, v20
    v_mul_f32 v27, v27, v20
    v_add_f32_dpp v24, v24, v24 row_ror:8 row_mask:0xf bank_mask:0x3
    v_add_f32_dpp v26, v26, v26 row_ror:8 row_mask:0xf bank_mask:0x3
    v_add_f32_dpp v24, v25, v25 row_ror:8 row_mask:0xf bank_mask:0xc
    v_add_f32_dpp v26, v27, v27 row_ror:8 row_mask:0xf bank_mask:0xc
    """)
    for pat in ("row_half_mirror","quad_perm:[1,0,3,2]","quad_perm:[2,3,0,1]"):
        a(f"v_add_f32_dpp v24, v24, v24 {pat} {DPPM}\nv_add_f32_dpp v26, v26, v26 {pat} {DPPM}")
    a(f"""
    v_mul_f32 v24, v24, v21
    v_mul_f32 v26, v26, v21
    v_cvt_pk_bf16_f32 v24, v24, v24
    v_cvt_pk_bf16_f32 v26, v26, v26
    ds_write2_b32 v12, v24, v26 offset0:{OC//4} offset1:{OC//4+2}
    ds_write_b32 v60, v61 offset:{C_COEF}
    """)
    stQ.at()
    stQ.flush()
    a("s_endpgm")
    a("L_S1:")
    for i in range(9): a(f"v_and_b32 v{E+i}, 0xffff0000, v{DS+i}")
    a(f"""
    v_add_u32 v126, {YL-XN}, v126
    v_add_u32 v127, {YL-XN}, v127
    s_mov_b32 s3, 2
    s_branch L_LN
    """)
    QD=112; QT=96
    a(f"""
    L_Sbody:
    v_mov_b32 v60, 0
    v_mov_b32 v61, 1
    ds_write_b32 v60, v61 offset:{C_Y}
    s_setprio 0
    v_and_b32 v16, 3, v1
    v_lshlrev_b32 v16, 2, v16
    v_lshlrev_b32 v62, 3, v1
    s_lshl_b32 s62, s4, 12
    s_add_u32 s62, s62, {QBOX}
    v_mov_b32 v59, 0xffffff00
    v_lshrrev_b32 v3, 5, v1
    v_lshlrev_b32 v19, 5, v3
    v_and_b32 v4, 7, v1
    v_lshl_or_b32 v4, v3, 3, v4
    v_lshlrev_b32 v18, 11, v4
    v_bfe_u32 v4, v1, 1, 3
    v_lshl_or_b32 v3, v3, 3, v4
    v_lshlrev_b32 v17, 11, v3
    v_and_b32 v3, 1, v1
    v_lshl_or_b32 v17, v3, 5, v17
    v_bfe_u32 v3, v1, 4, 1
    v_lshl_or_b32 v17, v3, 4, v17
    s_lshl_b32 s56, s4, 15
    s_add_u32 s56, s56, {H1BOX}
    s_lshl_b32 s57, s5, 6
    s_add_u32 s57, s57, s56
    s_lshl_b32 s66, s5, 4
    s_add_u32 s66, s66, s56
    s_movk_i32 s64, 0xff
    s_movk_i32 s65, 0xff
    s_mov_b64 s[8:9], -1
    s_mov_b64 s[10:11], -1
    s_mov_b64 s[12:13], -1
    s_mov_b64 s[14:15], -1
    s_waitcnt lgkmcnt(0)
    """)
    for t in tagcode(): a(t)
    for k in range(4): a(f"v_not_b32 v{QD+4*k}, s68")
    wait_flag(KH,khn,8,60,cmp="gt")
    stS.at()
    gather(4,1,QD,QT,5,8,lambda k,d: f"buffer_load_dwordx4 v[{d}:{d+3}], v2, s[40:43], s62 offen offset:{1024*k} sc1",None,L("qd"))
    a(f"""
    v_pk_add_f32 v[{QT}:{QT+1}], v[{QT}:{QT+1}], v[{QT+4}:{QT+5}]
    v_pk_add_f32 v[{QT+2}:{QT+3}], v[{QT+2}:{QT+3}], v[{QT+6}:{QT+7}]
    v_pk_add_f32 v[{QT+8}:{QT+9}], v[{QT+8}:{QT+9}], v[{QT+12}:{QT+13}]
    v_pk_add_f32 v[{QT+10}:{QT+11}], v[{QT+10}:{QT+11}], v[{QT+14}:{QT+15}]
    v_pk_add_f32 v[{QT}:{QT+1}], v[{QT}:{QT+1}], v[{QT+8}:{QT+9}]
    v_pk_add_f32 v[{QT+2}:{QT+3}], v[{QT+2}:{QT+3}], v[{QT+10}:{QT+11}]
    v_cvt_pk_bf16_f32 v4, v{QT}, v{QT+1}
    v_cvt_pk_bf16_f32 v5, v{QT+2}, v{QT+3}
    ds_write_b64 v62, v[4:5] offset:{LQ}
    ds_write_b32 v60, v61 offset:{C_Q}
    """)
    stS.at()
    wait_flag(K_L,1,8,16,f"ds_read_b128 v[20:23], v19 offset:{ML}\nds_read_b128 v[24:27], v19 offset:{ML+16}")
    a(f"""
    v_max3_f32 v4, v20, v22, v24
    v_max_f32 v4, v4, v26
    """)
    for k in range(4): a(f"v_sub_f32 v{28+k}, v{20+2*k}, v4")
    for k in range(4): a(f"v_mul_f32 v{28+k}, {f32(LOG2E)}, v{28+k}")
    for k in range(4): a(f"v_exp_f32 v{28+k}, v{28+k}")
    a(f"""
    v_mul_f32 v5, v21, v28
    v_fmac_f32 v5, v23, v29
    v_fmac_f32 v5, v25, v30
    v_fmac_f32 v5, v27, v31
    v_and_or_b32 v6, v4, v59, s70
    v_and_or_b32 v4, v4, v59, s68
    v_and_or_b32 v7, v5, v59, s71
    v_and_or_b32 v5, v5, v59, s69
    s_mov_b64 exec, s[64:65]
    buffer_store_dwordx4 v[4:7], v18, s[40:43], s66 offen offset:1024 sc1
    s_mov_b64 exec, -1
    ds_write_b32 v60, v61 offset:{C_ST}
    s_setprio 3
    """)
    stS.at()
    wait_flag(K_O,1,8,16,"\n".join(f"ds_read_b128 v[{32+4*w}:{35+4*w}], v2 offset:{OP+1024*w}" for w in range(4)))
    for r in range(4): a(f"v_mul_f32 v{32+r}, v{32+r}, v28")
    for w in range(1,4):
        for r in range(4): a(f"v_fmac_f32 v{32+r}, v{32+4*w+r}, v{28+w}")
    for r in range(4): a(f"v_and_or_b32 v{32+r}, v{32+r}, v59, s{68+r}")
    a(f"buffer_store_dwordx4 v[32:35], v17, s[40:43], s57 offen sc1\nds_write_b32 v60, v61 offset:{C_OP}")
    stS.at()
    stS.flush()
    a("s_endpgm")

    a(f"""
    L_Wbody:
    s_barrier
    s_mul_i32 s61, s7, 72
    s_add_u32 s61, s61, {YL}
    v_lshl_add_u32 v6, v3, 3, s61
    v_lshl_add_u32 v7, v14, 2, s61
    v_add_u32 v7, 64, v7
    v_lshlrev_b32 v11, 1, v4
    v_lshl_or_b32 v11, v14, 4, v11
    v_lshl_or_b32 v11, v12, 8, v11
    v_lshl_or_b32 v11, v13, 9, v11
    v_cmp_gt_u32 vcc, 0x300, v11
    v_mov_b32 v8, 0
    v_mov_b32 v10, 1
    v_cndmask_b32 v11, v15, v11, vcc
    v_cmp_eq_u32 vcc, v12, v13
    v_mov_b32 v2, {ZERO}
    s_and_b32 s61, s7, 1
    s_lshl_b32 s61, s61, 3
    s_add_u32 s61, s61, {HC}
    v_cndmask_b32 v7, v2, v7, vcc
    v_lshl_add_u32 v0, v3, 3, s61
    v_lshlrev_b32 v4, 3, v3
    v_lshl_add_u32 v3, v14, 2, s61
    v_add_u32 v3, 64, v3
    v_cndmask_b32 v3, v2, v3, vcc
    s_mul_i32 s62, s62, 2304
    s_lshl_b32 s63, s60, 1
    s_add_u32 s62, s62, s63
    s_add_u32 s62, s62, {HBOX}
    s_mul_i32 s58, s2, 2304
    s_add_u32 s58, s58, s63
    s_add_u32 s58, s58, {H2BOX}
    s_mov_b64 s[40:41], s[32:33]
    s_mov_b32 s42, 0x10000000
    v_mov_b32 v15, 0xffffff00
    """)
    masks(MKW,TM)
    def abuild(n):
        for gi in range(n):
            for d in range(4): a(f"v_and_b32 v{AO+4*gi+d}, v{CF+gi}, v{MKW+d}")
    def merge_pub(so, cnt):
        X0,X1,X2=ACC,ACC+4,ACC+8
        for i in range(4): a(f"v_permlane32_swap_b32 v{X0+i}, v{X1+i}")
        for i in range(4): a(f"v_add_f32_dpp v{X0+i}, v{X1+i}, v{X0+i} row_ror:8 row_mask:0xf bank_mask:0x3")
        for i in range(4): a(f"v_mov_b32 v{TM+i}, v{X2+i}")
        for i in range(4): a(f"v_permlane32_swap_b32 v{X2+i}, v{TM+i}")
        for i in range(4): a(f"v_add_f32_dpp v{X0+i}, v{X2+i}, v{TM+i} row_ror:8 row_mask:0xf bank_mask:0xc")
        for i in range(4): a(f"v_add_f32 v{X0+i}, v{X0+i}, v{DM+i}")
        for i in range(4): a(f"v_and_or_b32 v{X0+i}, v{X0+i}, v15, s{68+i}")
        vw.issue("st"+str(so),f"buffer_store_dwordx4 v[{X0}:{X0+3}], v11, s[40:43], s{so} offen sc1")
        a(f"s_mov_b64 exec, 1\nds_add_u32 v8, v10 offset:{cnt}\ns_mov_b64 exec, -1")
    def stream(seq, win, on_arrive):
        tags=[t for t,_ in seq]
        n=0; arrived=0; bonus=0
        while arrived<len(seq):
            while n<len(seq) and n-arrived<win+bonus:
                vw.issue(*seq[n]); n+=1
            if n==len(seq) and not any(on_arrive(t,True) for t in tags[arrived:]): break
            t=tags[arrived]
            vw.wait(t); arrived+=1
            if on_arrive(t,True)==2: bonus=xtra
            while n<len(seq) and n-arrived<win+bonus:
                vw.issue(*seq[n]); n+=1
            on_arrive(t,False)
    def w1_arrive(t,query):
        if not t.startswith("a"): return 0
        k=int(t[1:])
        if query: return 2 if k==5 else 1
        gi,c=divmod(k,3)
        mfma(ACC+4*c,AO+4*gi,T1+4*k,gi==0)
        if k==5:
            merge_pub(62,C_HP); stW.at()
    w1seq=[(f"a{k}",w1load(k)) for k in range(6)]
    woseq=[(f"wo{k}",woload(k)) for k in range(1,6)]
    w2seq=[(f"b{k}",w2load(k)) for k in range(6)]
    def ywait():
        wait_flag(C_Y,1,2,8,f"ds_read_b64 v[{CF}:{CF+1}], v6\nds_read_b32 v{CF+2}, v7")
        for t in tagcode(): a(t)
        abuild(3)
        vw.wait("m1")
        mfma(DM,AO+8,M1,True)
    def gatewait():
        a("s_setprio 0")
        wait_flag(VT,gate,2,8,cmp="gt")
        a("s_setprio 2")
        stW.at()
    def wo_part(first):
        wait_flag(C_COEF,1,2,8,f"ds_read_b64 v[{CF}:{CF+1}], v4 offset:{OC}")
        stW.at()
        abuild(2)
        for k in range(6):
            gi,c=divmod(k,3)
            vw.wait(f"wo{k}")
            mfma(ACC+4*c,AO+4*gi,WOR+4*k,first and gi==0)
    def w2_part(first):
        wait_flag(C_H,1,2,8,f"ds_read_b64 v[{CF}:{CF+1}], v0\nds_read_b32 v{CF+2}, v3")
        stW.at()
        abuild(3)
        mfma(DM,AO+8,M2,True)
        for k in range(6):
            gi,c=divmod(k,3)
            vw.wait(f"b{k}")
            if k==5: stW.at()
            mfma(ACC+4*c,AO+4*gi,T2+4*k,first and gi==0)
    if late:
        ywait()
        gatewait()
        stream(w1seq+woseq+w2seq, ww, w1_arrive)
        stW.at()
        a("s_setprio 3")
        wo_part(True); w2_part(False)
    else:
        for i in range(ww1): vw.issue(*w1seq[i])
        ywait()
        for k in range(6):
            vw.wait(f"a{k}")
            if k+ww1<6: vw.issue(*w1seq[k+ww1])
            w1_arrive(f"a{k}",False)
        gatewait()
        stream(w2seq+woseq, ww, lambda t,q: 0)
        stW.at()
        a("s_setprio 3")
        w2_part(True); wo_part(False)
    merge_pub(58,C_PUB)
    stW.at()
    stW.flush()
    a("s_endpgm")

    F=16; D=32; TT=D+16*ns
    a(f"""
    L_Rbody:
    s_mul_i32 s64, s7, 9
    s_lshr_b32 s64, s64, 1
    s_mul_i32 s66, s6, 1152
    s_lshl3_add_u32 s58, s64, s66
    s_mul_i32 s56, s6, {32*2304}
    s_lshl4_add_u32 s56, s64, s56
    s_add_u32 s56, s56, {HBOX}
    s_add_u32 s57, s56, {8*2304}
    s_add_u32 s60, s56, {16*2304}
    s_add_u32 s61, s56, {24*2304}
    v_mul_u32_u24 v5, 2304, v4
    v_lshl_add_u32 v5, v3, 4, v5
    v_bfe_u32 v6, v1, 2, 1
    v_and_b32 v7, 2, v1
    v_or_b32 v6, v6, v7
    v_lshl_or_b32 v6, v3, 2, v6
    v_lshlrev_b32 v7, 2, v6
    v_lshlrev_b32 v6, 1, v6
    s_mul_i32 s64, s6, 18
    s_add_u32 s64, s64, s7
    v_lshrrev_b32 v8, 4, v1
    v_and_b32 v9, 1, v8
    v_lshrrev_b32 v8, 1, v8
    v_lshl_or_b32 v8, v9, 1, v8
    v_lshlrev_b32 v8, 1, v8
    s_lshl_b32 s59, s64, 3
    s_movk_i32 s46, 9216
    s_mov_b32 s47, 0x20000
    s_movk_i32 s50, 1152
    s_mov_b32 s51, 0x20000
    s_movk_i32 s54, 1152
    s_mov_b32 s55, 0x20000
    s_movk_i32 s38, 1152
    s_mov_b32 s42, 0x10000000
    s_waitcnt lgkmcnt(0)
    s_load_dword s73, s[32:33], 0
    s_mov_b64 s[44:45], s[22:23]
    s_mov_b64 s[48:49], s[8:9]
    s_mov_b64 s[52:53], s[26:27]
    s_mov_b64 s[36:37], s[28:29]
    s_mov_b64 s[40:41], s[32:33]
    buffer_load_ushort v9, v6, s[44:47], s58 offen
    buffer_load_ushort v10, v8, s[48:51], s59 offen
    buffer_load_ushort v11, v8, s[52:55], s59 offen
    buffer_load_ushort v12, v8, s[36:39], s59 offen sc1
    s_barrier
    v_mov_b32 v14, 0
    v_mov_b32 v15, 1
    s_mov_b32 s62, 0xcccccccc
    s_mov_b32 s63, 0xcccccccc
    s_mov_b32 s65, 0
    s_movk_i32 s66, {hfew}
    s_mov_b32 s8, -1
    s_movk_i32 s9, 0xff
    s_waitcnt lgkmcnt(0)
    """)
    for t in tagcode(): a(t)
    c1=-2*0.7978845608028654*LOG2E; c2=c1*0.044715
    a(f"""
    v_mov_b32 v{TT+2}, {f32(c1)}
    v_mov_b32 v{TT+3}, {f32(c2)}
    s_waitcnt vmcnt(0)
    v_lshlrev_b32 v9, 16, v9
    v_lshlrev_b32 v10, 16, v10
    v_lshlrev_b32 v11, 16, v11
    v_add_f32 v10, v10, v11
    v_mov_b32 v12, s72
    v_mov_b32 v13, {C_HP if wi is None else C_WI}
    L_Rgather:
    s_mov_b64 s[10:11], s[8:9]
    s_mov_b64 s[12:13], s[8:9]
    s_mov_b64 s[14:15], s[8:9]
    """)
    for k in range(4*ns): a(f"v_not_b32 v{D+4*k}, s68")
    wait_flag(0,3,11,13)
    a("s_setprio 3")
    if stamps: a("s_memrealtime s[82:83]")
    SO=(56,57,60,61)
    gather(4,ns,D,F,TT,8,lambda k,d: f"buffer_load_dwordx4 v[{d}:{d+3}], v5, s[40:43], s{SO[k]} offen sc1","s66",L("gd"))
    a(f"""
    v_pk_add_f32 v[{F}:{F+1}], v[{F}:{F+1}], v[{F+4}:{F+5}]
    v_pk_add_f32 v[{F+8}:{F+9}], v[{F+8}:{F+9}], v[{F+12}:{F+13}]
    v_pk_add_f32 v[{F+2}:{F+3}], v[{F+2}:{F+3}], v[{F+6}:{F+7}]
    v_pk_add_f32 v[{F+10}:{F+11}], v[{F+10}:{F+11}], v[{F+14}:{F+15}]
    v_pk_add_f32 v[{F}:{F+1}], v[{F}:{F+1}], v[{F+8}:{F+9}]
    v_pk_add_f32 v[{F+2}:{F+3}], v[{F+2}:{F+3}], v[{F+10}:{F+11}]
    s_cmp_lg_u32 s65, 0
    s_cbranch_scc1 L_Rfinal
    """)
    if stamps: a("s_memrealtime s[84:85]")
    a(f"""
    v_add_f32_dpp v{F}, v{F}, v{F} row_half_mirror row_mask:0xf bank_mask:0x5
    v_add_f32_dpp v{F+2}, v{F+2}, v{F+2} row_half_mirror row_mask:0xf bank_mask:0x5
    v_add_f32_dpp v{F}, v{F+1}, v{F+1} row_half_mirror row_mask:0xf bank_mask:0xa
    v_add_f32_dpp v{F+2}, v{F+3}, v{F+3} row_half_mirror row_mask:0xf bank_mask:0xa
    v_add_f32_dpp v{F}, v{F}, v{F} quad_perm:[2,3,0,1] {DPPM}
    v_add_f32_dpp v{F+2}, v{F+2}, v{F+2} quad_perm:[2,3,0,1] {DPPM}
    v_cndmask_b32 v{F}, v{F}, v{F+2}, s[62:63]
    v_add_f32_dpp v{F}, v{F}, v{F} quad_perm:[1,0,3,2] {DPPM}
    v_cvt_pk_bf16_f32 v{F}, 0, v{F}
    v_add_f32 v{F}, v{F}, v9
    v_cvt_pk_bf16_f32 v{F}, 0, v{F}
    v_mul_f32 v{F+1}, v{F}, v{F}
    v_fma_f32 v{F+1}, v{F+1}, v{TT+3}, v{TT+2}
    v_mul_f32 v{F+1}, v{F+1}, v{F}
    v_exp_f32 v{F+1}, v{F+1}
    v_add_f32 v{F+1}, 1.0, v{F+1}
    v_rcp_f32 v{F+1}, v{F+1}
    s_mov_b32 exec_hi, 0xff
    v_mul_f32 v{F}, v{F}, v{F+1}
    v_cvt_pk_bf16_f32 v{F}, v{F}, v{F}
    ds_write_b32 v7, v{F} offset:{HC}
    ds_write_b32 v14, v15 offset:{C_H}
    s_mov_b64 exec, -1
    """)
    if stamps: a("s_memrealtime s[86:87]\ns_waitcnt lgkmcnt(0)\ns_mov_b64 s[88:89], s[82:83]")
    a(f"""
    s_cmpk_lt_u32 s2, {NRED}
    s_cbranch_scc0 L_Rfin
    s_setprio 0
    s_lshl_b32 s56, s64, 4
    s_add_u32 s56, s56, {H2BOX}
    s_add_u32 s57, s56, {64*2304}
    s_add_u32 s60, s56, {128*2304}
    s_add_u32 s61, s56, {192*2304}
    s_mov_b32 s62, 0x00010001
    s_mov_b32 s63, 0x00010001
    s_mov_b32 s65, 1
    s_movk_i32 s66, {h2few}
    s_mov_b64 s[8:9], -1
    v_mul_u32_u24 v5, 2304, v1
    v_mov_b32 v13, {C_PUB}
    s_waitcnt vmcnt(0)
    s_branch L_Rgather
    L_Rfinal:
    v_permlane32_swap_b32 v{F}, v{F+1}
    v_permlane32_swap_b32 v{F+2}, v{F+3}
    v_add_f32 v{F}, v{F}, v{F+1}
    v_add_f32 v{F+2}, v{F+2}, v{F+3}
    v_permlane16_swap_b32 v{F}, v{F+2}
    v_add_f32 v{F}, v{F}, v{F+2}
    """)
    for r in (8,4,2,1): a(f"v_add_f32_dpp v{F}, v{F}, v{F} row_ror:{r} {DPPM}")
    a(f"""
    v_add_f32 v{F}, v{F}, v10
    v_cvt_pk_bf16_f32 v{F}, v{F}, v{F}
    s_mov_b64 exec, s[62:63]
    buffer_store_short v{F}, v8, s[36:39], s59 offen{' sc1' if outsc1 else ''}
    s_cmp_lg_u32 s2, 0
    s_cbranch_scc1 L_Rfin2
    s_mov_b64 exec, 1
    buffer_store_dword v12, off, s[40:43], 0 sc1
    L_Rfin2:
    """)
    if stamps: a("s_memrealtime s[90:91]")
    stR.flush(6)
    a("s_endpgm\nL_Rfin:")
    stR.flush(5)
    a("""
    L_end:
    s_endpgm
    L_codeend:
    """)
    text,n=hazard.fix(a.text())
    src=wrap(text,256,NW*64,LDS_SIZE,128,sgpr=96)
    open(name+".s","w").write(src); build(name+".s",name+".co")
    print(name,"nops inserted",n)
    return f"echo == {name}; timeout 60 ./bench {name}.co {KN} 256 {NW*64} {LDS_SIZE} 24 {16 if stamps else 0} 3 1"

def batch(specs, sh="run5.sh", filt=None, env=""):
    cmds=["cd dev"]; names=[]
    for n,k in specs:
        c=gen(n,**k)
        if env and k.get("stamps"): c=c.replace("timeout",env+" timeout")
        if filt and k.get("stamps"): c+=f" | grep -v -E '{filt}'"
        cmds.append(c); names.append(n)
    open(sh,"w").write("\n".join(cmds)+"\n")
    print('["dev/bench","dev/thrash.co","dev/%s",'%sh+",".join(f'"dev/{n}.co"' for n in names)+"]")

if __name__=="__main__":
    F="dbg|thrash|seed|w(2|3|8|9|11|12) ?\\."
    batch([("k5_a",dict(stamps=True,wi="b5",stg=4)),("k5_b",dict(stamps=True,wi="b2",stg=4)),("k5_c",dict(stamps=True,wi="b5",stg=4,ww=5,vt=14)),("k5_d",dict(stamps=True,wi="b5",stg=4,wk=5,wv=5,ww=7))],filt=F)
```

```python
import re
TRANS=("v_exp_f32","v_log_f32","v_rcp_f32","v_rsq_f32","v_sqrt_f32","v_sin_f32","v_cos_f32","v_rcp_iflag_f32")
def regs(op):
    op=op.strip()
    op=op.lstrip('-').strip('|')
    m=re.fullmatch(r"([vsa])(\d+)",op)
    if m: return {(m.group(1),int(m.group(2)))}
    m=re.fullmatch(r"([vsa])\[(\d+):(\d+)\]",op)
    if m: return {(m.group(1),i) for i in range(int(m.group(2)),int(m.group(3))+1)}
    if op in("vcc","vcc_lo","vcc_hi"): return {("vcc",0)}
    if op in("exec","exec_lo","exec_hi"): return {("exec",0)}
    if op=="m0": return {("m0",0)}
    return set()
class I:
    def __init__(self,text):
        self.text=text
        t=text.split(";")[0].strip()
        self.label=None; self.mn=None
        if t.endswith(":"): self.label=t[:-1]; return
        if not t or t.startswith("."): return
        parts=t.split(None,1); self.mn=parts[0]; rest=parts[1] if len(parts)>1 else ""
        ops=[o.strip() for o in rest.split(",")] if rest else []
        out=[];cur=""
        for o in ops:
            cur=o if not cur else cur+","+o
            if cur.count("[")==cur.count("]"): out.append(cur);cur=""
        ops=out
        self.mods=""
        if ops:
            last=ops[-1].split(None,1)
            ops[-1]=last[0]
            if len(last)>1: self.mods=last[1]
        self.ops=ops
        mn=self.mn
        self.valu=mn.startswith("v_")
        self.mfma=mn.startswith("v_mfma")
        self.dot=mn.startswith("v_dot")
        self.trans=any(mn.startswith(x) for x in TRANS)
        self.dpp=("_dpp" in mn) or ("row_" in self.mods) or ("quad_perm" in self.mods)
        self.perm=mn.startswith("v_permlane")
        self.rdl=mn.startswith(("v_readlane","v_readfirstlane","v_writelane"))
        self.vmem=mn.startswith(("buffer_","global_","flat_"))
        self.ds=mn.startswith("ds_")
        self.salu=mn.startswith("s_")
        R=[regs(o) for o in ops]
        d=set();u=set()
        if self.valu:
            if mn=="v_nop": pass
            elif mn.startswith("v_cmpx"): d={("exec",0)}|R[0]; u=set().union(*R[1:])
            elif self.perm and "swap" in mn: d=R[0]|R[1]; u=R[0]|R[1]
            elif re.match(r"v_(add|sub|subrev|addc|subb|subbrev)_co",mn): d=R[0]|R[1]; u=set().union(*R[2:])
            else:
                d=R[0]; u=set().union(*R[1:]) if len(R)>1 else set()
                if mn.startswith(("v_fmac","v_mac","v_dot2c","v_dot4c","v_writelane","v_pk_fmac")) or self.dpp: u|=R[0]
                if mn.startswith("v_cndmask") and len(ops)==3: u|={("vcc",0)}
            if self.mfma: self.A,self.B,self.C=R[1],R[2],R[3]
        elif self.vmem:
            if "_load" in mn: d=R[0]; u=set().union(*R[1:])
            else:
                u=set().union(*R)
                if "atomic" in mn and (" sc0" in " "+self.mods): d=R[0]
            self.wide=("_store" in mn) and ("x3" in mn or "x4" in mn)
            self.sdata=R[0] if self.wide else set()
        elif self.ds:
            if mn.startswith("ds_read") or "_rtn" in mn or mn.startswith(("ds_bpermute","ds_permute","ds_swizzle")): d=R[0]; u=set().union(*R[1:])
            else: u=set().union(*R) if R else set()
        else:
            if mn.startswith(("s_cmp","s_cbranch","s_branch","s_waitcnt","s_nop","s_sleep","s_setprio","s_barrier","s_endpgm","s_bitcmp")):
                u=set().union(*R) if R else set()
            else:
                d=R[0] if R else set(); u=set().union(*R[1:]) if len(R)>1 else set()
                if "saveexec" in mn: d=d|{("exec",0)}
        self.d=d; self.u=u
    def ws(self):
        if self.mn=="s_nop": return int(self.ops[0],0)+1
        return 1
def vset(s): return {r for r in s if r[0] in("v","a")}
def sset(s): return {r for r in s if r[0] in("s","vcc")}
def need(p,c):
    n=0
    if p.valu and not p.mfma:
        pv=vset(p.d); ps=sset(p.d)
        if c.rdl and pv&c.u and not c.mn.startswith("v_writelane"): n=max(n,1)
        if ps:
            if c.valu and ps&c.u: n=max(n,4 if c.rdl else 2)
            if c.vmem and ps&c.u: n=max(n,5)
        if p.trans and pv&(c.u) and not(c.trans): n=max(n,1)
        if c.dpp and pv&c.u: n=max(n,2)
        if c.perm and pv&c.u: n=max(n,2)
        if c.mfma and pv&(c.A|c.B|c.C): n=max(n,3 if p.dot else 2)
        if ("exec",0) in p.d:
            if c.dpp: n=max(n,5)
            if c.mfma or c.rdl or c.perm: n=max(n,4)
            if c.valu and ("exec",0) in c.u: n=max(n,2)
        if p.dot and pv&(c.u|c.d):
            same=(c.mn==p.mn) and c.dot and not (pv&(regs(c.ops[1])|regs(c.ops[2])))
            if not same: n=max(n,3)
        if ("op_sel" in p.mods or "dst_sel" in p.mods) and c.valu and pv&(c.u|c.d): n=max(n,1)
    if p.mfma:
        big = "32x32" in p.mn
        D=p.d
        if c.mfma:
            if D&(c.A|c.B): n=max(n,12 if big else 8)
            if D&c.C and not (D==c.C and c.mn==p.mn): n=max(n,10 if big else 6)
            if D&c.d and not (D==c.C): n=max(n,12 if big else 8)
        elif (c.valu or c.vmem or c.ds) and D&(c.u|c.d): n=max(n,12 if big else 8)
        if c.valu and not c.mfma and p.C&c.d: n=max(n,7 if big else 3)
    if p.vmem and getattr(p,"wide",False) and p.sdata&c.d: n=max(n,2 if c.valu else 1)
    if p.salu and ("m0",0) in p.d and (c.vmem and " lds" in " "+c.mods): n=max(n,1)
    return n
MAXD=12
def fix(text, verbose=False):
    L=[I(x) for x in text.split("\n")]
    changed=True; total=0
    while changed:
        changed=False
        lab={x.label:i for i,x in enumerate(L) if x.label}
        br={}
        for i,x in enumerate(L):
            if x.mn and x.mn.startswith(("s_branch","s_cbranch")):
                br.setdefault(lab[x.ops[0]],[]).append(i)
        def preds(i):
            r=[]
            if i>0:
                p=L[i-1]
                if not(p.mn and p.mn in("s_branch","s_endpgm","s_setpc_b64")): r.append(i-1)
            if L[i].label: r+=br.get(i,[])
            return r
        for i,c in enumerate(L):
            if not c.mn: continue
            extra=0
            st=[(p,0) for p in preds(i)]; seen={}
            while st:
                k,dist=st.pop()
                if k in seen and seen[k]<=dist: continue
                seen[k]=dist
                p=L[k]
                if p.mn:
                    nd=need(p,c)
                    if nd>dist: extra=max(extra,nd-dist)
                    dist2=dist+p.ws()
                else: dist2=dist
                if dist2<MAXD:
                    for q in preds(k): st.append((q,dist2))
            if extra:
                L.insert(i,I(f"    s_nop {extra-1}")); total+=extra
                if verbose: print("nop",extra,"before",c.text.strip())
                changed=True; break
    return "\n".join(x.text for x in L), total
```

```python
import gen5
F="dbg|thrash|seed|w(2|3|8|9|11|12) ?\\."
gen5.batch([("k5_a",dict(stamps=True,wi="b5",stg=4)),("k5_b",dict(stamps=True,wi="b5",stg=4,ww=12)),("k5_c",dict(stamps=True,wi="b5",stg=4,ww=17)),("k5_d",dict(stamps=True,wi="b5",stg=4,ww=9,gate=3)),
  ("k5_ship",dict(wi="b5",stg=4))],filt=F)
```

```python
import sys, struct
from common import *
import hazard
from build import build

def f32(x): return "0x%08x" % struct.unpack("<I", struct.pack("<f", x))[0]

QBOX=0x10000; H1BOX=0x20000; HBOX=0xA0000; H2BOX=0x130000; H1B=0x1C0000; STAMP=0x8000000
NRED=144
C_XN=12; VQ=0x7c; VH=0x78; C_Y=4; C_Q=8; C_H=16; C_COEF=20; C_PUB=28; C_HP=0x20; C_ST=0x24; C_OP=0x28; ZERO=0x30; C_WI=0x2c; C_QS=0x34; C_OS=0x38
KT=0x40; K_L=0x50; K_O=0x60; VT=0x70; KH=0x74; ML=0x80
OC=0x200; HC=0x240; LQ=0x400; XN=0x600; YL=0xF00; PL=0x1800; OP=0x2000; LDS_SIZE=0x3800
LOG2E=1.4426950408889634
DPPM="row_mask:0xf bank_mask:0xf"
NULL="0x80000000"
B0="src0_sel:BYTE_0 src1_sel:DWORD"
NW=14

def gen(name, stamps=False, lim_lds=0x4000, lim_g=0x2000, wk=4, wv=4, ww=6, ww1=3, late=True, kt=15, kh=8, khn=4, vt=15, gate=4,
        ns=4, ns1=2, hfew=8, h2few=8, warm=2, outsc1=True, wq_win=0, xtra=1, rot=True, wi=None, win_=3, stg=None, amp=None, sx=True, vh=8, hg=None, og=None, wo0e=True, cbx=0, qg='kh', wqw=18, qmap=0, so=False, vq=4, ofew=None, h1st=' sc1', pw=False, h2ld=' sc1', hst=' sc1', tw=0, dual=False, qst=' sc1', sw=0, safe=False, fake=False, lim1=32, limf=0x100):
    a=Asm()
    uid=[0]
    def L(p):
        uid[0]+=1; return f"L_{p}_{uid[0]}"
    class St:
        def __init__(s,nm=""): s.n=1; s.nm=nm
        def at(s):
            if not stamps: return
            k=s.n; s.n+=1; assert k<8
            a(f"s_memrealtime s[{80+2*k}:{81+2*k}]")
        def flush(s,n=None):
            if not stamps: return
            if n is None: n=s.n
            if amp:
                if amp[0]!=s.nm or amp[1]>=n: return
                k=amp[1]; lp=L("amp"); dn=L("ampd")
                a(f"""
                s_waitcnt lgkmcnt(0)
                s_sub_u32 s76, s{80+2*k}, s80
                s_mul_i32 s76, s76, 11
                s_min_u32 s76, s76, 50000
                s_mov_b32 s77, 20000
                {lp}:
                s_memrealtime s[78:79]
                s_sleep 4
                s_waitcnt lgkmcnt(0)
                s_sub_u32 s78, s78, s80
                s_sub_u32 s77, s77, 1
                s_cbranch_scc1 {dn}
                s_cmp_lt_u32 s78, s76
                s_cbranch_scc1 {lp}
                {dn}:
                """)
                return
            a(f"""
            s_mov_b64 s[76:77], s[32:33]
            s_mov_b32 s78, 0x10000000
            s_mov_b32 s79, 0x20000
            s_lshl_b32 s75, s2, 10
            s_add_u32 s75, s75, s74
            s_add_u32 s75, s75, {STAMP}
            s_mov_b64 exec, 1
            s_waitcnt lgkmcnt(0)
            """)
            for k in range(n):
                a(f"v_mov_b32 v2, s{80+2*k}\nv_mov_b32 v3, s{81+2*k}\nbuffer_store_dwordx2 v[2:3], off, s[76:79], s75 offset:{k*8}\ns_nop 1")
    def wait_flag(off, target, vt_, va, extra="", cmp="ne"):
        lp=L("w"); dn=L("d")
        a(f"""
        s_movk_i32 s34, {lim_lds}
        {lp}:
        ds_read_b32 v{vt_}, v{va} offset:{off}
        {extra}
        s_waitcnt lgkmcnt(0)
        v_cmp_{cmp}_u32 vcc, {target}, v{vt_}
        s_sub_u32 s34, s34, 1
        s_cbranch_scc1 {dn}
        s_cbranch_vccnz {lp}
        {dn}:
        """.replace("\n        \n","\n"))
    def tagcode():
        return ["s_mul_i32 s72, s73, 1664525","s_add_u32 s72, s72, 1013904223","s_or_b32 s72, s72, 0x01010101","s_xor_b32 s72, s72, s73",
                "s_and_b32 s68, s72, 0xff"+("\ns_xor_b32 s68, s68, s0" if safe else ""),"s_bfe_u32 s69, s72, 0x80008","s_bfe_u32 s70, s72, 0x80010","s_lshr_b32 s71, s72, 24"]
    def xcc(mv=None):
        if not safe: return
        a(f"s_getreg_b32 s0, hwreg(HW_REG_XCC_ID, 0, 4)\ns_movk_i32 s1, {limf}\ns_lshl_b32 s0, s0, 1")
        if mv is not None: a(f"v_mov_b32 v{mv}, -1")
    def wave_sum(v, s):
        for r in (8,4,2,1): a(f"v_add_f32_dpp v{v}, v{v}, v{v} row_ror:{r} {DPPM}")
        a(f"v_add_f32_dpp v{v}, v{v}, v{v} row_bcast:15 row_mask:0xa bank_mask:0xf")
        a(f"v_add_f32_dpp v{v}, v{v}, v{v} row_bcast:31 row_mask:0xc bank_mask:0xf")
        a(f"v_readlane_b32 s{s}, v{v}, 63")
    def masks(base, t):
        a(f"""
        v_and_b32 v{t}, 1, v1
        v_mov_b32 v{t+1}, 0xffff
        v_lshlrev_b32 v{t}, 4, v{t}
        v_lshlrev_b32 v{t+1}, v{t}, v{t+1}
        v_bfe_u32 v{t+2}, v1, 1, 2
        """)
        for d in range(4):
            a(f"v_cmp_eq_u32 vcc, {d}, v{t+2}\nv_cndmask_b32 v{base+d}, 0, v{t+1}, vcc")
    def mfma(acc, A_, B_, first):
        a(f"v_mfma_f32_16x16x32_bf16 v[{acc}:{acc+3}], v[{A_}:{A_+3}], v[{B_}:{B_+3}], {'0' if first else f'v[{acc}:{acc+3}]'}")
    def gather(nl, NS, D, F, T, P, load, few, dn, mv=None, fb=None, lim=None):
        slow=L("gs"); s0=L("g0"); fl=L("fb") if safe else dn
        a(f"s_mov_b32 s34, {(lim or lim1) if safe else lim_g}")
        if few is not None or NS==1: a(f"{slow}:\ns_waitcnt vmcnt(0)")
        a(f"{s0}:")
        for s in range(NS):
            for k in range(nl):
                d=D+4*(s*nl+k); f=F+4*k; p=f"s[{P+2*k}:{P+2*k+1}]"
                if NS>1: a(f"s_waitcnt vmcnt({nl*NS-1})")
                a(f"s_mov_b64 exec, {p}")
                for r in range(4):
                    if r==0 and safe: a(f"v_bitop3_b32 v{f}, s68, v{d}, v{mv} bitop3:0x28")
                    else: a(f"v_xor_b32 v{f+r}, s{68+r}, v{d+r}")
                a(f"""
                v_or3_b32 v{T}, v{f}, v{f+1}, v{f+2}
                v_or_b32 v{T}, v{T}, v{f+3}
                v_cmp_ne_u32_sdwa {p}, v{T}, 0 {B0}
                """)
                if nl==1:
                    a(f"s_cmp_eq_u64 {p}, 0\ns_cbranch_scc1 {dn}\ns_mov_b64 exec, {p}")
                else:
                    a(f"s_or_b64 exec, {p}, 1")
                a(load(k,d))
            if nl==2:
                a(f"s_or_b64 s[{P+8}:{P+9}], s[{P}:{P+1}], s[{P+2}:{P+3}]\ns_cbranch_scc0 {dn}")
            elif nl>1:
                assert nl==4
                a(f"""
                s_or_b64 s[{P+8}:{P+9}], s[{P}:{P+1}], s[{P+2}:{P+3}]
                s_or_b64 s[{P+10}:{P+11}], s[{P+4}:{P+5}], s[{P+6}:{P+7}]
                s_or_b64 s[{P+8}:{P+9}], s[{P+8}:{P+9}], s[{P+10}:{P+11}]
                s_cbranch_scc0 {dn}
                """)
            if s==0:
                a(f"s_sub_u32 s34, s34, 1\ns_cbranch_scc1 {fl}")
                if NS==1: a(f"s_branch {slow}")
                elif few is not None:
                    a(f"s_bcnt1_i32_b64 s35, s[{P+8}:{P+9}]\ns_cmp_gt_u32 s35, {few}\ns_cbranch_scc1 {slow}")
        if NS>1: a(f"s_branch {s0}")
        if safe:
            a(f"{fl}:\ns_mov_b64 exec, -1\ns_sub_u32 s1, s1, 1\ns_cbranch_scc1 {dn}\ns_waitcnt vmcnt(0)")
            fb()
            a(f"""
            buffer_wbl2 sc1
            s_waitcnt vmcnt(0)
            buffer_inv sc1
            s_waitcnt vmcnt(0)
            v_mov_b32 v{mv}, 0xffffffe1
            s_mov_b32 s34, 1
            s_branch {s0}
            """)
        a(f"{dn}:\ns_mov_b64 exec, -1")
    class VM:
        def __init__(s): s.q=[]; s.done=-1
        def issue(s,tag,text):
            a(text); s.q.append(tag)
            if tag==wi: a(f"s_mov_b64 exec, 1\nds_add_u32 v8, v10 offset:{C_WI}\ns_mov_b64 exec, -1")
        def wait(s,tag):
            i=s.q.index(tag)
            if i>s.done:
                a(f"s_waitcnt vmcnt({len(s.q)-1-i})"); s.done=i

    stS=St('S'); stK=St('K'); stV=St('V'); stW=St('W'); stR=St('R'); stQ=St('Q')
    if stamps: a("s_memrealtime s[80:81]")
    a(f"""
    s_cmpk_lt_u32 s2, 0x100
    s_cbranch_scc0 L_end
    {"s_and_b32 s3, s2, 31"+chr(10)+"s_lshr_b32 s2, s2, 5"+chr(10)+"s_lshl3_add_u32 s2, s3, s2" if fake else "s_nop 0"}
    s_load_dwordx16 s[8:23], s[0:1], 0
    s_load_dwordx8 s[24:31], s[0:1], 64
    s_load_dwordx2 s[32:33], s[0:1], 96
    v_readfirstlane_b32 s3, v0
    v_and_b32 v1, 63, v0
    v_lshlrev_b32 v2, 4, v0
    v_mov_b64 v[4:5], 0
    v_mov_b64 v[6:7], 0
    s_and_b32 s6, s2, 7
    s_bfe_u32 s7, s2, 0x10003
    """)
    if stamps: a("s_and_b32 s74, s3, 0x3c0")
    a(f"""
    s_lshr_b32 s3, s3, 6
    ds_write_b128 v2, v[4:7]
    s_lshl1_add_u32 s4, s6, s7
    s_lshr_b32 s5, s2, 4
    s_lshr_b32 s7, s2, 3
    s_mov_b32 s39, 0x20000
    v_lshlrev_b32 v2, 4, v1
    s_sub_u32 s35, s3, 1
    s_cbranch_scc1 L_Qstub
    s_and_b32 s60, s35, 3
    s_lshl_b32 s56, s4, 8
    s_lshl2_add_u32 s57, s5, s60
    s_add_u32 s56, s56, s57
    s_add_u32 s56, s56, 192
    s_add_u32 s61, s60, s5
    s_and_b32 s61, s61, {3 if rot else 0}
    s_lshl2_add_u32 s56, s56, s61
    s_lshl_b32 s56, s56, 12
    s_mov_b32 s38, 0x4000000
    s_cmp_lt_u32 s35, 4
    s_cbranch_scc0 L_notK
    """)
    KR=16
    def kvload(i): return f"buffer_load_dwordx4 v[{KR+4*i}:{KR+4*i+3}], v2, s[36:39], s{56+(i>>2)} offen offset:{(i&3)*1024} nt"
    a(f"""
    s_setprio 2
    s_xor_b32 s57, s56, 4096
    s_waitcnt lgkmcnt(0)
    s_mov_b64 s[36:37], s[10:11]
    """)
    stK.at()
    for i in range(wk): a(kvload(i))
    a("s_branch L_Kbody")
    a("L_Qstub:\ns_setprio 3")
    if warm:
        a(f"""
        s_getpc_b64 s[44:45]
        L_pc:
        s_mov_b32 s46, L_codeend-L_pc
        s_mov_b32 s47, 0x20000
        v_lshlrev_b32 v5, 7, v1
        """)
        for i in range(warm):
            a(f"s_movk_i32 s48, {8192*i}\nbuffer_load_dword v{100+i}, v5, s[44:47], s48 offen")
    a(f"""
    v_lshrrev_b32 v3, 3, v1
    v_and_b32 v4, 7, v1
    v_lshlrev_b32 v127, 1, v1
    s_movk_i32 s42, 1152
    s_mov_b32 s43, 0x20000
    v_lshlrev_b32 v4, 4, v4
    v_lshl_or_b32 v5, v3, 17, v4
    v_lshl_or_b32 v6, v3, 14, v4
    """)
    if qmap: a(f"""
    s_lshr_b32 s60, s6, 1
    s_and_b32 s61, s7, 3
    s_and_b32 s63, s6, 1
    s_lshr_b32 s45, s7, 2
    s_lshl3_add_u32 s63, s63, s45
    """)
    else: a(f"""
    s_lshr_b32 s60, s5, 2
    s_add_u32 s61, s5, {cbx}
    s_and_b32 s61, s61, 3
    s_mov_b32 s63, s4
    """)
    a(f"""
    s_mul_i32 s44, s60, {144*8192}
    s_lshl_b32 s45, s63, 9
    s_add_u32 s44, s44, s45
    s_lshl_b32 s45, s61, 7
    s_add_u32 s44, s44, s45
    """)
    for i in range(1,14): a(f"s_add_u32 s{44+i}, s44, {8192*i}")
    a(f"""
    s_add_u32 s58, s44, {8192*14}
    s_add_u32 s59, s44, {8192*15}
    s_mov_b32 s38, 4718592
    s_waitcnt lgkmcnt(0)
    s_mov_b64 s[40:41], s[8:9]
    s_mov_b64 s[36:37], s[14:15]
    """)
    stQ.at()
    a("""
    buffer_load_dwordx4 v[120:123], v2, s[40:43], 0 offen
    buffer_load_ushort v124, v127, s[40:43], 0 offen offset:1024
    """)
    def wqload(i):
        so=44+i if i<16 else 18+(i-16)
        return f"buffer_load_dwordx4 v[{16+4*i}:{16+4*i+3}], v{2 if i<16 else 0}, s[36:39], s{so} offen nt"
    a(f"v_mov_b32 v2, v5\nv_mov_b32 v0, v6\ns_add_u32 s18, s44, {8192*128}\ns_add_u32 s19, s44, {8192*129}")
    for i in range(wqw): a(wqload(i))
    a(f"""
    s_load_dword s73, s[32:33], 0
    s_branch L_Qbody
    """)
    a(f"""
    L_notK:
    s_mov_b32 s43, 0x20000
    s_cmp_lt_u32 s3, 10
    s_cbranch_scc1 L_notV
    s_waitcnt lgkmcnt(0)
    s_mov_b64 s[36:37], s[12:13]
    """)
    a("s_buffer_load_dword s75, s[36:39], s56" if sw&1 else kvload(0))
    a("s_branch L_Vbody")
    T1=16; M1=40; M2=44; WOR=48; T2=72; AO=96; ACC=108; DM=120; MKW=124; CF=12; TM=96
    a(f"""
    L_notV:
    v_lshrrev_b32 v3, 3, v1
    v_and_b32 v4, 7, v1
    s_cmp_lt_u32 s3, 7
    s_cbranch_scc1 L_notW
    v_lshlrev_b32 v4, 4, v4
    v_lshrrev_b32 v12, 5, v1
    v_bfe_u32 v13, v1, 3, 1
    v_bfe_u32 v14, v1, 4, 1
    v_lshl_or_b32 v7, v12, 7, v4
    v_lshl_or_b32 v7, v13, 8, v7
    v_mov_b32 v15, {NULL}
    v_cmp_gt_u32 vcc, 0x180, v7
    s_sub_u32 s3, s3, 7
    s_mul_i32 s60, s3, 384
    v_cndmask_b32 v7, v15, v7, vcc
    v_mul_u32_u24 v6, 9216, v14
    v_mul_u32_u24 v8, 1152, v14
    v_mul_u32_u24 v5, {2*9216}, v3
    v_mul_u32_u24 v9, 2304, v3
    v_add_u32 v6, v6, v7
    v_add_u32 v8, v8, v7
    v_add_u32 v5, v5, v4
    v_add_u32 v9, v9, v4
    s_mul_i32 s56, s7, {18*9216}
    s_mul_i32 s57, s6, 1152
    s_add_u32 s56, s56, s57
    s_add_u32 s56, s56, s60
    s_add_u32 s57, s56, 9216
    s_add_u32 s59, s56, {16*9216}
    s_lshl_b32 s64, s6, 5
    s_add_u32 s62, s64, s7
    s_mul_i32 s64, s62, {18*1152}
    s_add_u32 s64, s64, s60
    s_add_u32 s66, s64, {16*1152}
    s_lshl_b32 s67, s4, 4
    s_add_u32 s67, s67, s5
    s_mul_i32 s67, s67, 18432
    s_add_u32 s67, s67, s60
    s_mov_b32 s38, 5308416
    s_mov_b32 s46, 5308416
    s_mov_b32 s47, 0x20000
    s_mov_b32 s50, 4718592
    s_mov_b32 s51, 0x20000
    s_waitcnt lgkmcnt(0)
    s_mov_b64 s[36:37], s[20:21]
    s_mov_b64 s[44:45], s[24:25]
    s_mov_b64 s[48:49], s[16:17]
    s_load_dword s73, s[32:33], 0
    """)
    def w1load(k): gi,c=divmod(k,3); r=T1+4*k; return f"buffer_load_dwordx4 v[{r}:{r+3}], v5, s[36:39], s{56+gi} offen offset:{128*c} nt"
    def w2load(k): gi,c=divmod(k,3); r=T2+4*k; return f"buffer_load_dwordx4 v[{r}:{r+3}], v9, s[44:47], s64 offen offset:{1152*gi+128*c} nt"
    def woload(k): gi,c=divmod(k,3); r=WOR+4*k; return f"buffer_load_dwordx4 v[{r}:{r+3}], v9, s[48:51], s67 offen offset:{1152*gi+128*c} nt"
    vw=VM()
    vw.issue("m1",f"buffer_load_dwordx4 v[{M1}:{M1+3}], v6, s[36:39], s59 offen nt")
    m2l=f"buffer_load_dwordx4 v[{M2}:{M2+3}], v{M2 if sw&2 else 8}, s[44:47], s66 offen nt"
    if sw&2: a(f"v_mov_b32 v{M2}, v8\ns_buffer_load_dword s75, s[44:47], s66\ns_buffer_load_dword s76, s[48:51], s67"); assert not wo0e
    else: vw.issue("m2",m2l)
    if sw&2: pass
    elif wo0e: vw.issue("wo0",woload(0))
    else: a("s_mov_b64 exec, 1"); vw.issue("wowarm",f"buffer_load_dword v{WOR}, off, s[48:51], s67 nt"); a("s_mov_b64 exec, -1")
    if not late:
        for i in range(ww1): vw.issue(f"a{i}",w1load(i))
    a("s_branch L_Wbody")
    a(f"""
    L_notW:
    s_cmp_eq_u32 s3, 6
    s_cbranch_scc1 L_Rbody
    s_setprio 3
    v_lshlrev_b32 v127, 1, v1
    s_movk_i32 s42, 1152
    s_waitcnt lgkmcnt(0)
    s_mov_b64 s[40:41], s[8:9]
    {"s_memrealtime s[82:83]" if stamps else "s_nop 0"}
    """)
    if not sx:
        a("""
        buffer_load_dwordx4 v[120:123], v2, s[40:43], 0 offen
        buffer_load_ushort v124, v127, s[40:43], 0 offen offset:1024
        """)
    a(f"""
    s_load_dword s73, s[32:33], 0
    v_mov_b32 v11, 0
    s_barrier
    s_mov_b64 s[40:41], s[32:33]
    s_mov_b32 s42, 0x10000000
    v_mov_b32 v125, {f32(1.0/576)}
    v_lshlrev_b32 v126, 5, v1
    v_lshlrev_b32 v127, 2, v1
    """)
    if sx:
        wait_flag(C_XN,1,8,11,f"ds_read_b128 v[98:101], v126 offset:{XN}\nds_read_b128 v[102:105], v126 offset:{XN+16}\nds_read_b32 v106, v127 offset:{XN+2048}")
        if stamps: a("s_memrealtime s[84:85]")
        a("s_branch L_S1")
    else:
        a("s_waitcnt vmcnt(0)\ns_branch L_LN0")
    a(f"""
    L_Kbody:
    s_xor_b32 s58, s56, 8192
    s_xor_b32 s59, s56, 12288
    s_lshl_b32 s61, s60, 2
    v_mov_b32 v10, s61
    v_mov_b32 v11, 1
    v_mov_b32 v6, 0
    s_barrier
    """)
    for i in range(wk,16):
        a(f"s_waitcnt vmcnt({wk-1})")
        a(kvload(i))
        if i==kh: a(f"s_mov_b64 exec, 1\nds_add_u32 v6, v11 offset:{KH}\ns_mov_b64 exec, -1")
        if i==kt: a(f"ds_write_b32 v10, v11 offset:{KT}")
    stK.at()
    a(f"""
    s_setprio 0
    v_and_b32 v7, 15, v1
    v_lshlrev_b32 v7, 4, v7
    v_lshrrev_b32 v14, 2, v1
    s_lshl_b32 s61, s60, 9
    v_lshl_add_u32 v14, v14, 5, s61
    v_and_b32 v15, 8, v1
    s_lshl_b32 s61, s60, 3
    v_lshl_add_u32 v15, v15, 2, s61
    s_mov_b32 s62, 0x11111111
    s_mov_b32 s63, 0x11111111
    """)
    wait_flag(C_Q,1,8,6,f"ds_read_b128 v[80:83], v7 offset:{LQ}\nds_read_b128 v[84:87], v7 offset:{LQ+256}")
    stK.at()
    a("s_setprio 1")
    SA=88; SB=104
    def step1(g):
        for i in range(4*g,4*g+4): a(f"v_add_f32_dpp v{SA+i}, v{SA+i}, v{SA+i} row_ror:8 row_mask:0xf bank_mask:0x3")
        for i in range(4*g,4*g+4): a(f"v_add_f32_dpp v{SA+i}, v{SB+i}, v{SB+i} row_ror:8 row_mask:0xf bank_mask:0xc")
    for g in range(4):
        if 4*g+3>15-wk: a(f"s_waitcnt vmcnt({12-4*g})")
        if g==3: stK.at()
        for c in range(4):
            for i in range(4*g,4*g+4):
                for (S,q) in ((SA,80),(SB,84)):
                    if c==0: a(f"v_dot2_f32_bf16 v{S+i}, v{KR+4*i}, v{q}, 0")
                    else: a(f"v_dot2c_f32_bf16 v{S+i}, v{KR+4*i+c}, v{q+c}")
            if c==0 and g>0: step1(g-1)
    step1(3)
    for r in range(8): a(f"v_add_f32_dpp v{SA+r}, v{SA+r}, v{SA+r} row_half_mirror row_mask:0xf bank_mask:0x5")
    for r in range(8): a(f"v_add_f32_dpp v{SA+r}, v{SA+8+r}, v{SA+8+r} row_half_mirror row_mask:0xf bank_mask:0xa")
    for pat in ("quad_perm:[1,0,3,2]","quad_perm:[2,3,0,1]"):
        for i in range(8): a(f"v_add_f32_dpp v{SA+i}, v{SA+i}, v{SA+i} {pat} {DPPM}")
    for i in range(8): a(f"v_cvt_pk_bf16_f32 v{SA+i}, 0, v{SA+i}")
    for i in range(8): a(f"v_mul_f32 v{SA+i}, 0x3db504f3, v{SA+i}")
    for i in range(8): a(f"v_cvt_pk_bf16_f32 v{SA+i}, 0, v{SA+i}")
    def rows(op,v,t):
        a(f"""
        v_{op}_f32_dpp v{v}, v{v}, v{v} row_half_mirror {DPPM}
        v_mov_b32 v{t}, v{v}
        v_permlane32_swap_b32 v{v}, v{t}
        v_{op}_f32 v{v}, v{v}, v{t}
        v_mov_b32 v{t}, v{v}
        v_permlane16_swap_b32 v{v}, v{t}
        v_{op}_f32 v{v}, v{v}, v{t}
        """)
    a(f"""
    v_max3_f32 v12, v{SA}, v{SA+1}, v{SA+2}
    v_max3_f32 v13, v{SA+3}, v{SA+4}, v{SA+5}
    v_max3_f32 v12, v12, v{SA+6}, v{SA+7}
    v_max_f32 v12, v12, v13
    """)
    rows("max",12,13)
    for i in range(8): a(f"v_sub_f32 v{SA+i}, v{SA+i}, v12")
    for i in range(8): a(f"v_mul_f32 v{SA+i}, {f32(LOG2E)}, v{SA+i}")
    for i in range(8): a(f"v_exp_f32 v{SA+i}, v{SA+i}")
    a(f"""
    v_add_f32 v13, v{SA}, v{SA+1}
    v_add_f32 v3, v{SA+2}, v{SA+3}
    v_add_f32 v4, v{SA+4}, v{SA+5}
    v_add_f32 v5, v{SA+6}, v{SA+7}
    v_add_f32 v13, v13, v3
    v_add_f32 v4, v4, v5
    v_add_f32 v13, v13, v4
    """)
    for i in range(8): a(f"v_cvt_pk_bf16_f32 v{SA+i}, v{SA+i}, v{SA+i}")
    rows("add",13,3)
    a(f"""
    s_mov_b64 exec, s[62:63]
    ds_write_b128 v14, v[{SA}:{SA+3}] offset:{PL}
    ds_write_b128 v14, v[{SA+4}:{SA+7}] offset:{PL+16}
    ds_write_b64 v15, v[12:13] offset:{ML}
    ds_write_b32 v10, v11 offset:{K_L}
    """)
    stK.at()
    stK.flush()
    a("s_endpgm")
    MK=112; AC=116; PR=80; AT=96
    a(f"""
    L_Vbody:
    s_xor_b32 s57, s56, 4096
    s_xor_b32 s58, s56, 8192
    s_xor_b32 s59, s56, 12288
    s_lshl_b32 s61, s60, 2
    v_mov_b32 v10, s61
    v_mov_b32 v11, 1
    v_mov_b32 v6, 0
    v_lshrrev_b32 v14, 3, v1
    s_lshl_b32 s61, s60, 9
    v_lshl_add_u32 v14, v14, 6, s61
    s_lshl_b32 s61, s60, 10
    v_add_u32 v15, s61, v2
    """)
    masks(MK,3)
    a("s_barrier")
    wait_flag(KT,1,8,10)
    a("s_setprio 2")
    stV.at()
    for i in range(0 if sw&1 else 1,16):
        if i>wv-(sw&1): a(f"s_waitcnt vmcnt({wv-1})")
        a(kvload(i))
        if i==vt: a(f"s_mov_b64 exec, 1\nds_add_u32 v6, v11 offset:{VT}\ns_mov_b64 exec, -1")
        if i==vq and qg=="vq": a(f"s_mov_b64 exec, 1\nds_add_u32 v6, v11 offset:{VQ}\ns_mov_b64 exec, -1")
        if i==vh and hg=="vh": a(f"s_mov_b64 exec, 1\nds_add_u32 v6, v11 offset:{VH}\ns_mov_b64 exec, -1")
    stV.at()
    wait_flag(K_L,1,8,10,"\n".join(f"ds_read_b128 v[{PR+4*i}:{PR+4*i+3}], v14 offset:{PL+16*i}" for i in range(4)))
    stV.at()
    nE=16-wv
    def aloc(t): return AT+4*(t&1) if t<nE else KR+4*(t-nE)
    for t in range(nE+1):
        if t<nE:
            for d in range(4): a(f"v_and_b32 v{aloc(t)+d}, v{PR+t}, v{MK+d}")
        if t>0: mfma(AC,aloc(t-1),KR+4*(t-1),t==1)
    for t in range(nE,16):
        for d in range(4): a(f"v_and_b32 v{aloc(t)+d}, v{PR+t}, v{MK+d}")
    a("s_setprio 3")
    for t in range(nE,16):
        a(f"s_waitcnt vmcnt({15-t})")
        if t==15: stV.at()
        mfma(AC,aloc(t),KR+4*t,False)
    a(f"ds_write_b128 v15, v[{AC}:{AC+3}] offset:{OP}\nds_write_b32 v10, v11 offset:{K_O}")
    stV.at()
    stV.flush()
    a("s_endpgm")

    a(f"""
    L_Qbody:
    s_barrier
    s_mul_i32 s62, s60, 576
    s_add_u32 s62, s62, {XN}
    v_lshl_add_u32 v7, v3, 6, s62
    v_lshl_add_u32 v8, v3, 3, s62
    v_and_b32 v11, 15, v1
    v_lshrrev_b32 v9, 4, v1
    v_lshlrev_b32 v11, 5, v11
    v_lshl_or_b32 v11, v9, 4, v11
    v_mov_b32 v10, 0xffffff00
    s_lshl_b32 s62, s63, 12
    s_lshl_b32 s63, s60, 10
    s_add_u32 s62, s62, s63
    s_lshl_b32 s63, s61, 8
    s_add_u32 s62, s62, s63
    s_add_u32 s62, s62, {QBOX}
    s_mov_b64 s[40:41], s[32:33]
    s_mov_b32 s42, 0x10000000
    s_mov_b32 s64, 0x00ff00ff
    s_mov_b32 s65, 0
    """)
    masks(12,4)
    xcc()
    a(f"""
    v_mov_b32 v125, {f32(1.0/576)}
    v_lshlrev_b32 v126, 5, v1
    v_lshlrev_b32 v127, 2, v1
    s_waitcnt vmcnt({wqw})
    """)
    for k in range(wqw,18): a(f"s_waitcnt vmcnt({wqw-1})\n"+wqload(k))
    a("L_LN0:")
    if stamps: a("s_memrealtime s[84:85]"); stQ.n=3; stS.n=3
    E=88; DS=98; T=107
    for d in range(4):
        a(f"v_lshlrev_b32 v{E+2*d}, 16, v{120+d}\nv_and_b32 v{E+2*d+1}, 0xffff0000, v{120+d}")
    a(f"v_lshlrev_b32 v{E+8}, 16, v124")
    a("L_LN:")
    def layernorm(src, dst, t):
        a(f"""
        v_add_f32 v{t}, v{src}, v{src+1}
        v_add_f32 v{t+1}, v{src+2}, v{src+3}
        v_add_f32 v{t+2}, v{src+4}, v{src+5}
        v_add_f32 v{t+3}, v{src+6}, v{src+7}
        v_add_f32 v{t}, v{t}, v{src+8}
        v_add_f32 v{t+1}, v{t+1}, v{t+2}
        v_add_f32 v{t}, v{t}, v{t+3}
        v_add_f32 v{t}, v{t}, v{t+1}
        """)
        wave_sum(t,66)
        a(f"v_mul_f32 v{t+1}, s66, v125")
        for i in range(9): a(f"v_sub_f32 v{t+2+i}, v{src+i}, v{t+1}")
        a(f"v_mul_f32 v{t}, v{t+2}, v{t+2}\nv_mul_f32 v{t+11}, v{t+3}, v{t+3}")
        for i in range(2,9):
            a(f"v_fmac_f32 v{t+(11 if i&1 else 0)}, v{t+2+i}, v{t+2+i}")
        a(f"v_add_f32 v{t}, v{t}, v{t+11}")
        a(f"v_cvt_pk_bf16_f32 v{t+1}, 0, v{t+1}")
        red=[f"v_add_f32_dpp v{t}, v{t}, v{t} row_ror:{r} {DPPM}" for r in (8,4,2,1)]
        red+=[f"v_add_f32_dpp v{t}, v{t}, v{t} row_bcast:15 row_mask:0xa bank_mask:0xf", f"v_add_f32_dpp v{t}, v{t}, v{t} row_bcast:31 row_mask:0xc bank_mask:0xf"]
        oth=[f"v_sub_f32 v{t+2+i}, v{src+i}, v{t+1}" for i in range(9)]+[f"v_cvt_pk_bf16_f32 v{t+2+i}, 0, v{t+2+i}" for i in range(9)]
        for k in range(6):
            a(red[k]); a(oth[2*k]); a(oth[2*k+1])
        a(f"v_readlane_b32 s67, v{t}, 63")
        a(oth[12]); a(oth[13])
        a(f"""
        v_mul_f32 v{t}, s67, v125
        v_cvt_pk_bf16_f32 v{t}, 0, v{t}
        v_add_f32 v{t}, {f32(1e-5)}, v{t}
        v_cvt_pk_bf16_f32 v{t}, 0, v{t}
        v_sqrt_f32 v{t}, v{t}
        """)
        a(oth[14]); a(oth[15])
        a(f"""
        v_cvt_pk_bf16_f32 v{t}, 0, v{t}
        v_rcp_f32 v{t+1}, v{t}
        """)
        a(oth[16]); a(oth[17])
        for i in range(9): a(f"v_mul_f32 v{dst+i}, v{t+2+i}, v{t+1}")
        for i in range(9): a(f"v_fma_f32 v{t+2+i}, -v{dst+i}, v{t}, v{t+2+i}")
        for i in range(9): a(f"v_fmac_f32 v{dst+i}, v{t+2+i}, v{t+1}")
        for i in range(9): a(f"v_cvt_pk_bf16_f32 v{dst+i}, v{dst+i}, v{dst+i}")
    layernorm(E,DS,T)
    a(f"""
    s_cmp_eq_u32 s3, 5
    s_cbranch_scc1 L_S1
    ds_write_b128 v126, v[{DS}:{DS+3}] offset:{XN}
    ds_write_b128 v126, v[{DS+4}:{DS+7}] offset:{XN+16}
    ds_write_b32 v127, v{DS+8} offset:{XN+2048}
    s_cmp_lg_u32 s3, 0
    s_cbranch_scc1 L_Sbody
    v_mov_b32 v107, 1
    ds_write_b32 v107, v107 offset:{C_XN-1}
    """)
    for i in range(4): a(f"ds_read_b128 v[{88+4*i}:{91+4*i}], v7 offset:{16*i}")
    a("ds_read_b64 v[104:105], v8 offset:512\ns_waitcnt lgkmcnt(0)")
    tc=tagcode()
    for i in range(19):
        if i<18:
            for d in range(4): a(f"v_and_b32 v{106+4*(i&1)+d}, v{88+i}, v{12+d}")
        if i>0:
            k=i-1
            a(f"s_waitcnt vmcnt({17-k})")
            mfma(116,106+4*(k&1),16+4*k,k==0)
    for t in tc[:4]: a(t)
    for i in range(4): a(f"v_mov_b32 v{106+i}, v{116+i}")
    a(tc[4])
    for i in range(4): a(f"v_permlane32_swap_b32 v{116+i}, v{106+i}")
    a(tc[5])
    for i in range(4): a(f"v_add_f32_dpp v{116+i}, v{106+i}, v{116+i} row_ror:8 {DPPM}")
    a(tc[6]); a(tc[7])
    for i in range(4): a(f"v_add_u32 v{116+i}, 0x80, v{116+i}")
    for i in range(4): a(f"v_and_or_b32 v{116+i}, v{116+i}, v10, s{68+i}")
    a(f"""
    s_mov_b64 exec, s[64:65]
    buffer_store_dwordx4 v[116:119], v11, s[40:43], s62 offen{qst}
    s_mov_b64 exec, -1
    """)
    stQ.at()
    a(f"""
    s_setprio 0
    v_and_b32 v3, 15, v1
    v_lshrrev_b32 v4, 4, v1
    v_lshlrev_b32 v10, 6, v3
    v_lshl_or_b32 v10, v4, 4, v10
    v_lshlrev_b32 v11, 4, v3
    v_bfe_u32 v3, v1, 3, 1
    v_lshlrev_b32 v4, 4, v4
    v_lshl_or_b32 v12, v3, 2, v4
    v_mov_b32 v60, 0
    v_mov_b32 v61, 1
    s_lshl_b32 s56, s4, 4
    s_add_u32 s56, s56, s5
    s_lshl_b32 s56, s56, 11
    s_add_u32 s56, s56, {H1BOX}
    s_mov_b64 s[8:9], -1
    v_not_b32 v16, s68
    """)
    if safe: a(f"v_mov_b32 v63, -1\ns_waitcnt vmcnt(0)\nds_write_b32 v60, v61 offset:{C_QS}"); assert so
    def statmath():
        a(f"v_max_f32_dpp v22, v20, v20 row_ror:8 {DPPM}")
        for r in (4,2,1): a(f"v_max_f32_dpp v22, v22, v22 row_ror:{r} {DPPM}")
        a(f"""
        v_sub_f32 v20, v20, v22
        v_mul_f32 v20, {f32(LOG2E)}, v20
        v_exp_f32 v20, v20
        v_mul_f32 v21, v21, v20
        """)
        for r in (8,4,2,1): a(f"v_add_f32_dpp v21, v21, v21 row_ror:{r} {DPPM}")
        a("v_rcp_f32 v21, v21")
    stl=lambda d: f"buffer_load_dwordx4 v[{d}:{d+3}], v11, s[40:43], s56 offen offset:1024 sc1"
    ol=lambda d: f"buffer_load_dwordx4 v[{d}:{d+3}], v10, s[40:43], s56 offen sc1"
    def ogate():
        if wi is not None and og is None: wait_flag(C_WI,win_,8,60,cmp="gt")
        else: wait_flag(C_OP,1,8,60)
        a("s_setprio 3")
        stQ.at()
    if so:
        for s in range(2*ns1): a(f"v_not_b32 v{64+4*s}, s68")
        a("s_mov_b64 s[10:11], -1")
        if pw: a(stl(28).replace(" sc1","")+"\n"+ol(32).replace(" sc1",""))
        ogate()
        gather(2,ns1,64,20,5,8,lambda k,d: ol(d) if k else stl(d),ofew,L("od"),63,lambda: wait_flag(C_OS,1,8,60))
        stQ.at()
        statmath()
    else:
        for s in range(ns1): a(f"v_not_b32 v{32+4*s}, s68")
        if stg: wait_flag(VT,stg,8,60,cmp="gt")
        else: wait_flag(C_ST,1,8,60)
        stQ.at()
        gather(1,1,16,20,5,8,lambda k,d: stl(d),None,L("sd"))
        statmath()
        a("s_mov_b64 s[8:9], -1")
        stQ.at()
        ogate()
        gather(1,ns1,32,24,5,8,lambda k,d: ol(d),None,L("od"))
    a(f"""
    v_mul_f32 v24, v24, v20
    v_mul_f32 v26, v26, v20
    v_mul_f32 v25, v25, v20
    v_mul_f32 v27, v27, v20
    v_add_f32_dpp v24, v24, v24 row_ror:8 row_mask:0xf bank_mask:0x3
    v_add_f32_dpp v26, v26, v26 row_ror:8 row_mask:0xf bank_mask:0x3
    v_add_f32_dpp v24, v25, v25 row_ror:8 row_mask:0xf bank_mask:0xc
    v_add_f32_dpp v26, v27, v27 row_ror:8 row_mask:0xf bank_mask:0xc
    """)
    for pat in ("row_half_mirror","quad_perm:[1,0,3,2]","quad_perm:[2,3,0,1]"):
        a(f"v_add_f32_dpp v24, v24, v24 {pat} {DPPM}\nv_add_f32_dpp v26, v26, v26 {pat} {DPPM}")
    a(f"""
    v_mul_f32 v24, v24, v21
    v_mul_f32 v26, v26, v21
    v_cvt_pk_bf16_f32 v24, v24, v24
    v_cvt_pk_bf16_f32 v26, v26, v26
    ds_write2_b32 v12, v24, v26 offset0:{OC//4} offset1:{OC//4+2}
    ds_write_b32 v60, v61 offset:{C_COEF}
    """)
    stQ.at()
    stQ.flush()
    a("s_endpgm")
    a("L_S1:")
    for i in range(9): a(f"v_and_b32 v{E+i}, 0xffff0000, v{DS+i}")
    a(f"""
    v_add_u32 v126, {YL-XN}, v126
    v_add_u32 v127, {YL-XN}, v127
    s_mov_b32 s3, 2
    s_branch L_LN
    """)
    QD=112; QT=96
    a(f"""
    L_Sbody:
    v_mov_b32 v60, 0
    v_mov_b32 v61, 1
    ds_write_b32 v60, v61 offset:{C_Y}
    s_setprio 0
    v_and_b32 v16, 3, v1
    v_lshlrev_b32 v16, 2, v16
    v_lshlrev_b32 v62, 3, v1
    s_lshl_b32 s62, s4, 12
    s_add_u32 s62, s62, {QBOX}
    v_mov_b32 v59, 0xffffff00
    v_lshrrev_b32 v3, 5, v1
    v_lshlrev_b32 v19, 5, v3
    v_and_b32 v4, 7, v1
    v_lshl_or_b32 v4, v3, 3, v4
    v_lshlrev_b32 v18, 11, v4
    v_bfe_u32 v4, v1, 1, 3
    v_lshl_or_b32 v3, v3, 3, v4
    v_lshlrev_b32 v17, 11, v3
    v_and_b32 v3, 1, v1
    v_lshl_or_b32 v17, v3, 5, v17
    v_bfe_u32 v3, v1, 4, 1
    v_lshl_or_b32 v17, v3, 4, v17
    s_lshl_b32 s56, s4, 15
    s_add_u32 s56, s56, {H1BOX}
    s_lshl_b32 s57, s5, 6
    s_add_u32 s57, s57, s56
    s_lshl_b32 s66, s5, 4
    s_add_u32 s66, s66, s56
    s_movk_i32 s64, 0xff
    s_movk_i32 s65, 0xff
    s_mov_b64 s[8:9], -1
    s_mov_b64 s[10:11], -1
    s_mov_b64 s[12:13], -1
    s_mov_b64 s[14:15], -1
    s_waitcnt lgkmcnt(0)
    """)
    xcc(63)
    for t in tagcode(): a(t)
    for k in range(4): a(f"v_not_b32 v{QD+4*k}, s68")
    wait_flag(dict(kh=KH,vt=VT,vq=VQ)[qg],khn,8,60,cmp="gt")
    stS.at()
    gather(4,1,QD,QT,5,8,lambda k,d: f"buffer_load_dwordx4 v[{d}:{d+3}], v2, s[40:43], s62 offen offset:{1024*k} sc1",None,L("qd"),63,lambda: wait_flag(C_QS,1,8,60))
    a(f"""
    v_pk_add_f32 v[{QT}:{QT+1}], v[{QT}:{QT+1}], v[{QT+4}:{QT+5}]
    v_pk_add_f32 v[{QT+2}:{QT+3}], v[{QT+2}:{QT+3}], v[{QT+6}:{QT+7}]
    v_pk_add_f32 v[{QT+8}:{QT+9}], v[{QT+8}:{QT+9}], v[{QT+12}:{QT+13}]
    v_pk_add_f32 v[{QT+10}:{QT+11}], v[{QT+10}:{QT+11}], v[{QT+14}:{QT+15}]
    v_pk_add_f32 v[{QT}:{QT+1}], v[{QT}:{QT+1}], v[{QT+8}:{QT+9}]
    v_pk_add_f32 v[{QT+2}:{QT+3}], v[{QT+2}:{QT+3}], v[{QT+10}:{QT+11}]
    v_cvt_pk_bf16_f32 v4, v{QT}, v{QT+1}
    v_cvt_pk_bf16_f32 v5, v{QT+2}, v{QT+3}
    ds_write_b64 v62, v[4:5] offset:{LQ}
    ds_write_b32 v60, v61 offset:{C_Q}
    """)
    stS.at()
    wait_flag(K_L,1,8,16,f"ds_read_b128 v[20:23], v19 offset:{ML}\nds_read_b128 v[24:27], v19 offset:{ML+16}")
    a(f"""
    v_max3_f32 v4, v20, v22, v24
    v_max_f32 v4, v4, v26
    """)
    for k in range(4): a(f"v_sub_f32 v{28+k}, v{20+2*k}, v4")
    for k in range(4): a(f"v_mul_f32 v{28+k}, {f32(LOG2E)}, v{28+k}")
    for k in range(4): a(f"v_exp_f32 v{28+k}, v{28+k}")
    a(f"""
    v_mul_f32 v5, v21, v28
    v_fmac_f32 v5, v23, v29
    v_fmac_f32 v5, v25, v30
    v_fmac_f32 v5, v27, v31
    v_and_or_b32 v6, v4, v59, s70
    v_and_or_b32 v4, v4, v59, s68
    v_and_or_b32 v7, v5, v59, s71
    v_and_or_b32 v5, v5, v59, s69
    s_mov_b64 exec, s[64:65]
    buffer_store_dwordx4 v[4:7], v18, s[40:43], s66 offen offset:1024{h1st}
    s_mov_b64 exec, -1
    ds_write_b32 v60, v61 offset:{C_ST}
    s_setprio 3
    """)
    stS.at()
    wait_flag(K_O,1,8,16,"\n".join(f"ds_read_b128 v[{32+4*w}:{35+4*w}], v2 offset:{OP+1024*w}" for w in range(4)))
    for r in range(4): a(f"v_mul_f32 v{32+r}, v{32+r}, v28")
    for w in range(1,4):
        for r in range(4): a(f"v_fmac_f32 v{32+r}, v{32+4*w+r}, v{28+w}")
    for r in range(4): a(f"v_and_or_b32 v{32+r}, v{32+r}, v59, s{68+r}")
    a(f"buffer_store_dwordx4 v[32:35], v17, s[40:43], s57 offen{h1st}\nds_write_b32 v60, v61 offset:{C_OP}")
    if dual:
        a(f"""
        s_lshl_b32 s56, s4, 4
        s_add_u32 s56, s56, s5
        s_mul_i32 s56, s56, 1152
        s_add_u32 s56, s56, {H1B}
        v_lshrrev_b32 v3, 1, v19
        buffer_store_dwordx4 v[32:35], v2, s[40:43], s56 offen sc1
        s_mov_b32 s64, 1
        s_mov_b32 s65, 1
        s_mov_b64 exec, s[64:65]
        buffer_store_dwordx4 v[4:7], v3, s[40:43], s56 offen offset:1024 sc1
        s_mov_b64 exec, -1
        """)
    stS.at()
    if safe: a(f"s_waitcnt vmcnt(0)\nds_write_b32 v60, v61 offset:{C_OS}")
    stS.flush()
    a("s_endpgm")

    a(f"""
    L_Wbody:
    s_barrier
    s_mul_i32 s61, s7, 72
    s_add_u32 s61, s61, {YL}
    v_lshl_add_u32 v6, v3, 3, s61
    v_lshl_add_u32 v7, v14, 2, s61
    v_add_u32 v7, 64, v7
    v_lshlrev_b32 v11, 1, v4
    v_lshl_or_b32 v11, v14, 4, v11
    v_lshl_or_b32 v11, v12, 8, v11
    v_lshl_or_b32 v11, v13, 9, v11
    v_cmp_gt_u32 vcc, 0x300, v11
    v_mov_b32 v8, 0
    v_mov_b32 v10, 1
    v_cndmask_b32 v11, v15, v11, vcc
    v_cmp_eq_u32 vcc, v12, v13
    v_mov_b32 v2, {ZERO}
    s_and_b32 s61, s7, 1
    s_lshl_b32 s61, s61, 3
    s_add_u32 s61, s61, {HC}
    v_cndmask_b32 v7, v2, v7, vcc
    v_lshl_add_u32 v0, v3, 3, s61
    v_lshlrev_b32 v4, 3, v3
    v_lshl_add_u32 v3, v14, 2, s61
    v_add_u32 v3, 64, v3
    v_cndmask_b32 v3, v2, v3, vcc
    s_mul_i32 s62, s62, 2304
    s_lshl_b32 s63, s60, 1
    s_add_u32 s62, s62, s63
    s_add_u32 s62, s62, {HBOX}
    s_mul_i32 s58, s2, 2304
    s_add_u32 s58, s58, s63
    s_add_u32 s58, s58, {H2BOX}
    s_mov_b64 s[40:41], s[32:33]
    s_mov_b32 s42, 0x10000000
    v_mov_b32 v15, 0xffffff00
    """)
    masks(MKW,TM)
    xcc()
    def abuild(n):
        for gi in range(n):
            for d in range(4): a(f"v_and_b32 v{AO+4*gi+d}, v{CF+gi}, v{MKW+d}")
    def merge_pub(so, cnt):
        X0,X1,X2=ACC,ACC+4,ACC+8
        for i in range(4): a(f"v_permlane32_swap_b32 v{X0+i}, v{X1+i}")
        for i in range(4): a(f"v_add_f32_dpp v{X0+i}, v{X1+i}, v{X0+i} row_ror:8 row_mask:0xf bank_mask:0x3")
        for i in range(4): a(f"v_mov_b32 v{TM+i}, v{X2+i}")
        for i in range(4): a(f"v_permlane32_swap_b32 v{X2+i}, v{TM+i}")
        for i in range(4): a(f"v_add_f32_dpp v{X0+i}, v{X2+i}, v{TM+i} row_ror:8 row_mask:0xf bank_mask:0xc")
        for i in range(4): a(f"v_add_f32 v{X0+i}, v{X0+i}, v{DM+i}")
        for i in range(4): a(f"v_and_or_b32 v{X0+i}, v{X0+i}, v15, s{68+i}")
        vw.issue("st"+str(so),f"buffer_store_dwordx4 v[{X0}:{X0+3}], v11, s[40:43], s{so} offen{hst if so==62 else ' sc1'}")
        if safe and so==62: a("s_xor_b32 s68, s68, s0"); vw.wait("st62"); assert not late and hg
        a(f"s_mov_b64 exec, 1\nds_add_u32 v8, v10 offset:{cnt}\ns_mov_b64 exec, -1")
    def stream(seq, win, on_arrive):
        tags=[t for t,_ in seq]
        n=0; arrived=0; bonus=0
        while arrived<len(seq):
            while n<len(seq) and n-arrived<win+bonus:
                vw.issue(*seq[n]); n+=1
            if n==len(seq) and not any(on_arrive(t,True) for t in tags[arrived:]): break
            t=tags[arrived]
            vw.wait(t); arrived+=1
            if on_arrive(t,True)==2: bonus=xtra
            while n<len(seq) and n-arrived<win+bonus:
                vw.issue(*seq[n]); n+=1
            on_arrive(t,False)
    def w1_arrive(t,query):
        if not t.startswith("a"): return 0
        k=int(t[1:])
        if query: return 2 if k==5 else 1
        gi,c=divmod(k,3)
        mfma(ACC+4*c,AO+4*gi,T1+4*k,gi==0)
        if k==5:
            merge_pub(62,C_HP); stW.at()
    w1seq=[(f"a{k}",w1load(k)) for k in range(6)]
    woseq=[(f"wo{k}",woload(k)) for k in range(1 if wo0e else 0,6)]
    w2seq=([("m2",m2l)] if sw&2 else [])+[(f"b{k}",w2load(k)) for k in range(6)]
    def ywait():
        wait_flag(C_Y,1,2,8,f"ds_read_b64 v[{CF}:{CF+1}], v6\nds_read_b32 v{CF+2}, v7")
        for t in tagcode(): a(t)
        abuild(3)
        vw.wait("m1")
        mfma(DM,AO+8,M1,True)
    def gatewait():
        a("s_setprio 0")
        wait_flag(VT,gate,2,8,cmp="gt")
        a("s_setprio 2")
        stW.at()
    def wo_part(first):
        wait_flag(C_COEF,1,2,8,f"ds_read_b64 v[{CF}:{CF+1}], v4 offset:{OC}")
        stW.at()
        abuild(2)
        for k in range(6):
            gi,c=divmod(k,3)
            vw.wait(f"wo{k}")
            mfma(ACC+4*c,AO+4*gi,WOR+4*k,first and gi==0)
    def w2_part(first):
        wait_flag(C_H,1,2,8,f"ds_read_b64 v[{CF}:{CF+1}], v0\nds_read_b32 v{CF+2}, v3")
        stW.at()
        abuild(3)
        vw.wait("m2")
        mfma(DM,AO+8,M2,True)
        for k in range(6):
            gi,c=divmod(k,3)
            vw.wait(f"b{k}")
            if k==5: stW.at()
            mfma(ACC+4*c,AO+4*gi,T2+4*k,first and gi==0)
    if late:
        ywait()
        gatewait()
        stream(w1seq+woseq+w2seq, ww, w1_arrive)
        stW.at()
        a("s_setprio 3")
        wo_part(True); w2_part(False)
    else:
        for k in range(6-ww1):
            vw.wait(f"a{k}")
            vw.issue(*w1seq[k+ww1])
        ywait()
        for k in range(6):
            vw.wait(f"a{k}")
            w1_arrive(f"a{k}",False)
        gatewait()
        stream(w2seq+woseq, ww, lambda t,q: 0)
        stW.at()
        a("s_setprio 3")
        w2_part(True); wo_part(False)
    merge_pub(58,C_PUB)
    stW.at()
    stW.flush()
    a("s_endpgm")

    F=16; D=32; TT=D+16*ns
    a(f"""
    L_Rbody:
    s_mul_i32 s64, s7, 9
    s_lshr_b32 s64, s64, 1
    s_mul_i32 s66, s6, 1152
    s_lshl3_add_u32 s58, s64, s66
    s_mul_i32 s56, s6, {32*2304}
    s_lshl4_add_u32 s56, s64, s56
    s_add_u32 s56, s56, {HBOX}
    s_add_u32 s57, s56, {8*2304}
    s_add_u32 s60, s56, {16*2304}
    s_add_u32 s61, s56, {24*2304}
    v_mul_u32_u24 v5, 2304, v4
    v_lshl_add_u32 v5, v3, 4, v5
    v_bfe_u32 v6, v1, 2, 1
    v_and_b32 v7, 2, v1
    v_or_b32 v6, v6, v7
    v_lshl_or_b32 v6, v3, 2, v6
    v_lshlrev_b32 v7, 2, v6
    v_lshlrev_b32 v6, 1, v6
    s_mul_i32 s64, s6, 18
    s_add_u32 s64, s64, s7
    v_lshrrev_b32 v8, 4, v1
    v_and_b32 v9, 1, v8
    v_lshrrev_b32 v8, 1, v8
    v_lshl_or_b32 v8, v9, 1, v8
    v_lshlrev_b32 v8, 1, v8
    s_lshl_b32 s59, s64, 3
    s_movk_i32 s46, 9216
    s_mov_b32 s47, 0x20000
    s_movk_i32 s50, 1152
    s_mov_b32 s51, 0x20000
    s_movk_i32 s54, 1152
    s_mov_b32 s55, 0x20000
    s_movk_i32 s38, 1152
    s_mov_b32 s42, 0x10000000
    s_waitcnt lgkmcnt(0)
    s_load_dword s73, s[32:33], 0
    s_mov_b64 s[44:45], s[22:23]
    s_mov_b64 s[48:49], s[8:9]
    s_mov_b64 s[52:53], s[26:27]
    s_mov_b64 s[36:37], s[28:29]
    s_mov_b64 s[40:41], s[32:33]
    """)
    rl="""
    buffer_load_ushort v9, v6, s[44:47], s58 offen
    buffer_load_ushort v10, v8, s[48:51], s59 offen
    buffer_load_ushort v11, v8, s[52:55], s59 offen
    """
    if sw&4: a("s_buffer_load_dword s75, s[44:47], 0\ns_buffer_load_dword s76, s[52:55], 0\ns_buffer_load_dword s77, s[36:39], 0")
    else: a(rl+"buffer_load_ushort v12, v8, s[36:39], s59 offen sc1")
    if tw:
        a(f"""
        s_lshl_b32 s62, s4, 4
        s_add_u32 s62, s62, s5
        s_lshl_b32 s62, s62, 11
        s_add_u32 s62, s62, {H1BOX}
        v_lshlrev_b32 v13, 4, v1
        """)
        if tw==1:
            a(f"""
            s_mov_b64 exec, 1
            buffer_load_dword v14, off, s[40:43], s62 offset:1536 sc1
            buffer_load_dword v15, off, s[40:43], s56 sc1
            s_mov_b64 exec, -1
            """)
        else:
            a(f"""
            buffer_load_dwordx4 v[16:19], v13, s[40:43], s62 offen
            s_mov_b64 exec, 0xffff
            buffer_load_dwordx4 v[20:23], v13, s[40:43], s62 offen offset:1024
            s_mov_b64 exec, -1
            """)
        a("s_waitcnt vmcnt(0)" if False else "s_nop 0")
    a(f"""
    s_barrier
    s_mov_b32 s62, 0xcccccccc
    s_mov_b32 s63, 0xcccccccc
    s_mov_b32 s65, 0
    s_movk_i32 s66, {hfew}
    s_mov_b32 s8, -1
    s_movk_i32 s9, 0xff
    s_waitcnt lgkmcnt(0)
    """)
    xcc(TT+4)
    for t in tagcode(): a(t)
    if sw&4:
        a("v_mov_b32 v14, 0")
        wait_flag(KH,khn,11,14,cmp="gt")
        a(rl)
    c1=-2*0.7978845608028654*LOG2E; c2=c1*0.044715
    a(f"""
    v_mov_b32 v{TT+2}, {f32(c1)}
    v_mov_b32 v{TT+3}, {f32(c2)}
    s_waitcnt vmcnt(0)
    v_mov_b32 v14, 0
    v_mov_b32 v15, 1
    v_lshlrev_b32 v9, 16, v9
    v_lshlrev_b32 v10, 16, v10
    v_lshlrev_b32 v11, 16, v11
    v_add_f32 v10, v10, v11
    v_mov_b32 v12, s72
    v_mov_b32 v13, {dict(vh=VH,vt=VT,kh=KH)[hg] if hg else C_HP if wi is None else C_WI}
    s_mov_b32 s67, {4 if hg else 3}
    s_movk_i32 s58, {lim1}
    L_Rgather:
    s_mov_b64 s[10:11], s[8:9]
    s_mov_b64 s[12:13], s[8:9]
    s_mov_b64 s[14:15], s[8:9]
    """)
    for k in range(4*ns): a(f"v_not_b32 v{D+4*k}, s68")
    wait_flag(0,"s67",11,13,cmp="gt")
    a("s_setprio 3")
    if stamps: a("s_memrealtime s[82:83]")
    SO=(56,57,60,61)
    gather(4,ns,D,F,TT,8,lambda k,d: f"buffer_load_dwordx4 v[{d}:{d+3}], v5, s[40:43], s{SO[k]} offen sc1","s66",L("gd"),TT+4,lambda: wait_flag(C_HP,3,11,14,cmp="gt"),"s58")
    a(f"""
    v_pk_add_f32 v[{F}:{F+1}], v[{F}:{F+1}], v[{F+4}:{F+5}]
    v_pk_add_f32 v[{F+8}:{F+9}], v[{F+8}:{F+9}], v[{F+12}:{F+13}]
    v_pk_add_f32 v[{F+2}:{F+3}], v[{F+2}:{F+3}], v[{F+6}:{F+7}]
    v_pk_add_f32 v[{F+10}:{F+11}], v[{F+10}:{F+11}], v[{F+14}:{F+15}]
    v_pk_add_f32 v[{F}:{F+1}], v[{F}:{F+1}], v[{F+8}:{F+9}]
    v_pk_add_f32 v[{F+2}:{F+3}], v[{F+2}:{F+3}], v[{F+10}:{F+11}]
    s_cmp_lg_u32 s65, 0
    s_cbranch_scc1 L_Rfinal
    """)
    if stamps: a("s_memrealtime s[84:85]")
    a(f"""
    v_add_f32_dpp v{F}, v{F}, v{F} row_half_mirror row_mask:0xf bank_mask:0x5
    v_add_f32_dpp v{F+2}, v{F+2}, v{F+2} row_half_mirror row_mask:0xf bank_mask:0x5
    v_add_f32_dpp v{F}, v{F+1}, v{F+1} row_half_mirror row_mask:0xf bank_mask:0xa
    v_add_f32_dpp v{F+2}, v{F+3}, v{F+3} row_half_mirror row_mask:0xf bank_mask:0xa
    v_add_f32_dpp v{F}, v{F}, v{F} quad_perm:[2,3,0,1] {DPPM}
    v_add_f32_dpp v{F+2}, v{F+2}, v{F+2} quad_perm:[2,3,0,1] {DPPM}
    v_cndmask_b32 v{F}, v{F}, v{F+2}, s[62:63]
    v_add_f32_dpp v{F}, v{F}, v{F} quad_perm:[1,0,3,2] {DPPM}
    v_cvt_pk_bf16_f32 v{F}, 0, v{F}
    v_add_f32 v{F}, v{F}, v9
    v_cvt_pk_bf16_f32 v{F}, 0, v{F}
    v_mul_f32 v{F+1}, v{F}, v{F}
    v_fma_f32 v{F+1}, v{F+1}, v{TT+3}, v{TT+2}
    v_mul_f32 v{F+1}, v{F+1}, v{F}
    v_exp_f32 v{F+1}, v{F+1}
    v_add_f32 v{F+1}, 1.0, v{F+1}
    v_rcp_f32 v{F+1}, v{F+1}
    s_mov_b32 exec_hi, 0xff
    v_mul_f32 v{F}, v{F}, v{F+1}
    v_cvt_pk_bf16_f32 v{F}, v{F}, v{F}
    ds_write_b32 v7, v{F} offset:{HC}
    ds_write_b32 v14, v15 offset:{C_H}
    s_mov_b64 exec, -1
    """)
    if stamps: a("s_memrealtime s[86:87]\ns_waitcnt lgkmcnt(0)\ns_mov_b64 s[88:89], s[82:83]")
    a(f"""
    s_cmpk_lt_u32 s2, {NRED}
    s_cbranch_scc0 L_Rfin
    s_setprio 0
    s_lshl_b32 s56, s64, 4
    s_add_u32 s56, s56, {H2BOX}
    s_add_u32 s57, s56, {64*2304}
    s_add_u32 s60, s56, {128*2304}
    s_add_u32 s61, s56, {192*2304}
    s_mov_b32 s62, 0x00010001
    s_mov_b32 s63, 0x00010001
    s_mov_b32 s65, 1
    s_movk_i32 s66, {h2few}
    s_mov_b64 s[8:9], -1
    v_mul_u32_u24 v5, 2304, v1
    v_mov_b32 v13, {C_PUB}
    s_mov_b32 s67, 3
    s_movk_i32 s58, {lim_g}
    {"s_xor_b32 s68, s68, s0"+chr(10)+"s_mov_b32 s1, 0"+chr(10)+f"v_mov_b32 v{TT+4}, -1" if safe else "s_nop 0"}
    s_waitcnt vmcnt(0)
    s_branch L_Rgather
    L_Rfinal:
    v_permlane32_swap_b32 v{F}, v{F+1}
    v_permlane32_swap_b32 v{F+2}, v{F+3}
    v_add_f32 v{F}, v{F}, v{F+1}
    v_add_f32 v{F+2}, v{F+2}, v{F+3}
    v_permlane16_swap_b32 v{F}, v{F+2}
    v_add_f32 v{F}, v{F}, v{F+2}
    """)
    for r in (8,4,2,1): a(f"v_add_f32_dpp v{F}, v{F}, v{F} row_ror:{r} {DPPM}")
    a(f"""
    v_add_f32 v{F}, v{F}, v10
    v_cvt_pk_bf16_f32 v{F}, v{F}, v{F}
    s_mov_b64 exec, s[62:63]
    buffer_store_short v{F}, v8, s[36:39], s59 offen{' sc1' if outsc1 else ''}
    s_cmp_lg_u32 s2, 0
    s_cbranch_scc1 L_Rfin2
    s_mov_b64 exec, 1
    buffer_store_dword v12, off, s[40:43], 0 sc1
    L_Rfin2:
    """)
    if stamps: a("s_memrealtime s[90:91]")
    stR.flush(6)
    a("s_endpgm\nL_Rfin:")
    stR.flush(5)
    a("""
    L_end:
    s_endpgm
    L_codeend:
    """)
    text,n=hazard.fix(a.text())
    src=wrap(text,256,NW*64,LDS_SIZE,128,sgpr=96)
    open(name+".s","w").write(src); build(name+".s",name+".co")
    print(name,"nops inserted",n)
    return f"echo == {name}; timeout 60 ./bench {name}.co {KN} 256 {NW*64} {LDS_SIZE} 48 {16 if stamps else 0} 3 1"

def batch(specs, sh="run5.sh", filt=None, env=""):
    cmds=["cd dev"]; names=[]
    for n,k in specs:
        c=gen(n,**k)
        if env and k.get("stamps"): c=c.replace("timeout",env+" timeout")
        if filt and k.get("stamps"): c+=f" | grep -v -E '{filt}'"
        cmds.append(c); names.append(n)
    open(sh,"w").write("\n".join(cmds)+"\n")
    print('["dev/bench","dev/thrash.co","dev/%s",'%sh+",".join(f'"dev/{n}.co"' for n in names)+"]")

if __name__=="__main__":
    F="dbg|thrash|seed|w(2|3|8|9|11|12) ?\\."
    batch([("k5_a",dict(stamps=True,wi="b5",stg=4)),("k5_b",dict(stamps=True,wi="b2",stg=4)),("k5_c",dict(stamps=True,wi="b5",stg=4,ww=5,vt=14)),("k5_d",dict(stamps=True,wi="b5",stg=4,wk=5,wv=5,ww=7))],filt=F)
```

```python
import gen5,shutil,sys
E=dict(late=False,hg="vt",wo0e=False,wi="wo5",qg="vq",so=True,vq=4,qmap=0,qst="",h1st="",hst="",og="op",ns1=2,safe=True,hier=True,co1=True,h2few=64,coo=True,dry=True)
gen5.gen("k5_ship4",**E)
shutil.copy("k5_ship4.s","../cdna_kernels/parallel_sum__sliding_block_cached__mixer_channel_mlp__decode.s")
```

```python
import sys, struct
from common import *
import hazard
from build import build

def f32(x): return "0x%08x" % struct.unpack("<I", struct.pack("<f", x))[0]

QBOX=0x10000; H1BOX=0x20000; HBOX=0xA0000; H2BOX=0x130000; H1B=0x1C0000; H3BOX=0x8000; STAMP=0x8000000
NRED=144
C_XN=12; VQ=0x7c; VH=0x78; C_Y=4; C_Q=8; C_H=16; C_COEF=20; C_PUB=28; C_HP=0x20; C_ST=0x24; C_OP=0x28; ZERO=0x30; C_WI=0x2c; C_QS=0x34; C_OS=0x38
KT=0x40; K_L=0x50; K_O=0x60; VT=0x70; KH=0x74; ML=0x80
OC=0x200; HC=0x240; LQ=0x400; XN=0x600; YL=0xF00; PL=0x1800; OP=0x2000; LDS_SIZE=0x3800
LOG2E=1.4426950408889634
DPPM="row_mask:0xf bank_mask:0xf"
NULL="0x80000000"
B0="src0_sel:BYTE_0 src1_sel:DWORD"
NW=14

def gen(name, stamps=False, lim_lds=0x4000, lim_g=0x2000, wk=4, wv=4, ww=6, ww1=3, late=True, kt=15, kh=8, khn=4, vt=15, gate=4,
        ns=4, ns1=2, hfew=8, h2few=8, warm=2, outsc1=True, wq_win=0, xtra=1, rot=True, wi=None, win_=3, stg=None, amp=None, sx=True, vh=8, hg=None, og=None, wo0e=True, cbx=0, qg='kh', wqw=18, qmap=0, so=False, vq=4, ofew=None, h1st=' sc1', pw=False, h2ld=' sc1', hst=' sc1', tw=0, dual=False, qst=' sc1', sw=0, safe=False, fake=False, lim1=32, limf=0x100, h2m=False, h2g='pub', rep=1, wqf=' nt', wqr=0, wqh=0, h2st=' sc1', old=' sc1', qld=' sc1', hier=False, ns3=1, pd=0, co1=False, coo=False, dry=False):
    a=Asm()
    uid=[0]
    def L(p):
        uid[0]+=1; return f"L_{p}_{uid[0]}"
    class St:
        def __init__(s,nm=""): s.n=1; s.nm=nm
        def at(s):
            if not stamps: return
            k=s.n; s.n+=1; assert k<8
            a(f"s_memrealtime s[{80+2*k}:{81+2*k}]")
        def flush(s,n=None):
            if not stamps: return
            if n is None: n=s.n
            if amp:
                if amp[0]!=s.nm or amp[1]>=n: return
                k=amp[1]; lp=L("amp"); dn=L("ampd")
                a(f"""
                s_waitcnt lgkmcnt(0)
                s_sub_u32 s76, s{80+2*k}, s80
                s_mul_i32 s76, s76, 11
                s_min_u32 s76, s76, 50000
                s_mov_b32 s77, 20000
                {lp}:
                s_memrealtime s[78:79]
                s_sleep 4
                s_waitcnt lgkmcnt(0)
                s_sub_u32 s78, s78, s80
                s_sub_u32 s77, s77, 1
                s_cbranch_scc1 {dn}
                s_cmp_lt_u32 s78, s76
                s_cbranch_scc1 {lp}
                {dn}:
                """)
                return
            a(f"""
            s_mov_b64 s[76:77], s[32:33]
            s_mov_b32 s78, 0x10000000
            s_mov_b32 s79, 0x20000
            s_lshl_b32 s75, s2, 10
            s_add_u32 s75, s75, s74
            s_add_u32 s75, s75, {STAMP}
            s_mov_b64 exec, 1
            s_waitcnt lgkmcnt(0)
            """)
            for k in range(n):
                a(f"v_mov_b32 v2, s{80+2*k}\nv_mov_b32 v3, s{81+2*k}\nbuffer_store_dwordx2 v[2:3], off, s[76:79], s75 offset:{k*8}\ns_nop 1")
    def wait_flag(off, target, vt_, va, extra="", cmp="ne"):
        lp=L("w"); dn=L("d")
        a(f"""
        s_movk_i32 s34, {lim_lds}
        {lp}:
        ds_read_b32 v{vt_}, v{va} offset:{off}
        {extra}
        s_waitcnt lgkmcnt(0)
        v_cmp_{cmp}_u32 vcc, {target}, v{vt_}
        s_sub_u32 s34, s34, 1
        s_cbranch_scc1 {dn}
        s_cbranch_vccnz {lp}
        {dn}:
        """.replace("\n        \n","\n"))
    def tagcode():
        return ["s_mul_i32 s72, s73, 1664525","s_add_u32 s72, s72, 1013904223","s_or_b32 s72, s72, 0x01010101","s_xor_b32 s72, s72, s73",
                "s_and_b32 s68, s72, 0xff"+("\ns_xor_b32 s68, s68, s0" if safe else ""),"s_bfe_u32 s69, s72, 0x80008","s_bfe_u32 s70, s72, 0x80010","s_lshr_b32 s71, s72, 24"]
    def xcc(mv=None):
        if not safe: return
        a(f"s_getreg_b32 s0, hwreg(HW_REG_XCC_ID, 0, 4)\ns_movk_i32 s1, {limf}\ns_lshl_b32 s0, s0, 1")
        if mv is not None: a(f"v_mov_b32 v{mv}, -1")
    def wave_sum(v, s):
        for r in (8,4,2,1): a(f"v_add_f32_dpp v{v}, v{v}, v{v} row_ror:{r} {DPPM}")
        a(f"v_add_f32_dpp v{v}, v{v}, v{v} row_bcast:15 row_mask:0xa bank_mask:0xf")
        a(f"v_add_f32_dpp v{v}, v{v}, v{v} row_bcast:31 row_mask:0xc bank_mask:0xf")
        a(f"v_readlane_b32 s{s}, v{v}, 63")
    def masks(base, t):
        a(f"""
        v_and_b32 v{t}, 1, v1
        v_mov_b32 v{t+1}, 0xffff
        v_lshlrev_b32 v{t}, 4, v{t}
        v_lshlrev_b32 v{t+1}, v{t}, v{t+1}
        v_bfe_u32 v{t+2}, v1, 1, 2
        """)
        for d in range(4):
            a(f"v_cmp_eq_u32 vcc, {d}, v{t+2}\nv_cndmask_b32 v{base+d}, 0, v{t+1}, vcc")
    def mfma(acc, A_, B_, first):
        a(f"v_mfma_f32_16x16x32_bf16 v[{acc}:{acc+3}], v[{A_}:{A_+3}], v[{B_}:{B_+3}], {'0' if first else f'v[{acc}:{acc+3}]'}")
    def gather(nl, NS, D, F, T, P, load, few, dn, mv=None, fb=None, lim=None):
        slow=L("gs"); s0=L("g0"); fl=L("fb") if safe else dn
        a(f"s_mov_b32 s34, {(lim or lim1) if safe else lim_g}")
        if few is not None or NS==1: a(f"{slow}:\ns_waitcnt vmcnt(0)")
        a(f"{s0}:")
        for s in range(NS):
            for k in range(nl):
                d=D+4*(s*nl+k); f=F+4*k; p=f"s[{P+2*k}:{P+2*k+1}]"
                if NS>1: a(f"s_waitcnt vmcnt({nl*NS-1})")
                a(f"s_mov_b64 exec, {p}")
                for r in range(4):
                    if r==0 and safe: a(f"v_bitop3_b32 v{f}, s68, v{d}, v{mv} bitop3:0x28")
                    else: a(f"v_xor_b32 v{f+r}, s{68+r}, v{d+r}")
                a(f"""
                v_or3_b32 v{T}, v{f}, v{f+1}, v{f+2}
                v_or_b32 v{T}, v{T}, v{f+3}
                v_cmp_ne_u32_sdwa {p}, v{T}, 0 {B0}
                """)
                if nl==1:
                    a(f"s_cmp_eq_u64 {p}, 0\ns_cbranch_scc1 {dn}\ns_mov_b64 exec, {p}")
                else:
                    a(f"s_or_b64 exec, {p}, 1")
                a(load(k,d).replace(", v5,",f", v{5 if s%rep==0 else T+4+s%rep},") if lim else load(k,d))
            if nl==2:
                a(f"s_or_b64 s[{P+8}:{P+9}], s[{P}:{P+1}], s[{P+2}:{P+3}]\ns_cbranch_scc0 {dn}")
            elif nl>1:
                assert nl==4
                a(f"""
                s_or_b64 s[{P+8}:{P+9}], s[{P}:{P+1}], s[{P+2}:{P+3}]
                s_or_b64 s[{P+10}:{P+11}], s[{P+4}:{P+5}], s[{P+6}:{P+7}]
                s_or_b64 s[{P+8}:{P+9}], s[{P+8}:{P+9}], s[{P+10}:{P+11}]
                s_cbranch_scc0 {dn}
                """)
            if s==0:
                a(f"s_sub_u32 s34, s34, 1\ns_cbranch_scc1 {fl}")
                if NS==1: a(f"s_branch {slow}")
                elif few is not None:
                    a(f"s_bcnt1_i32_b64 s35, s[{P+8}:{P+9}]\ns_cmp_gt_u32 s35, {few}\ns_cbranch_scc1 {slow}")
        if NS>1: a(f"s_branch {s0}")
        if safe:
            a(f"{fl}:\ns_mov_b64 exec, -1\ns_sub_u32 s1, s1, 1\ns_cbranch_scc1 {dn}\ns_waitcnt vmcnt(0)")
            fb()
            a(f"""
            buffer_wbl2 sc1
            s_waitcnt vmcnt(0)
            buffer_inv sc1
            s_waitcnt vmcnt(0)
            v_mov_b32 v{mv}, 0xffffffe1
            s_mov_b32 s34, 1
            s_branch {s0}
            """)
        a(f"{dn}:\ns_mov_b64 exec, -1")
    class VM:
        def __init__(s): s.q=[]; s.done=-1
        def issue(s,tag,text):
            a(text); s.q.append(tag)
            if tag==wi: a(f"s_mov_b64 exec, 1\nds_add_u32 v8, v10 offset:{C_WI}\ns_mov_b64 exec, -1")
        def wait(s,tag):
            i=s.q.index(tag)
            if i>s.done:
                a(f"s_waitcnt vmcnt({len(s.q)-1-i})"); s.done=i

    stS=St('S'); stK=St('K'); stV=St('V'); stW=St('W'); stR=St('R'); stQ=St('Q')
    if stamps: a("s_memrealtime s[80:81]")
    a(f"""
    s_cmpk_lt_u32 s2, 0x100
    s_cbranch_scc0 L_end
    {"s_and_b32 s3, s2, 31"+chr(10)+"s_lshr_b32 s2, s2, 5"+chr(10)+"s_lshl3_add_u32 s2, s3, s2" if fake else "s_nop 0"}
    s_load_dwordx16 s[8:23], s[0:1], 0
    s_load_dwordx8 s[24:31], s[0:1], 64
    s_load_dwordx2 s[32:33], s[0:1], 96
    v_readfirstlane_b32 s3, v0
    v_and_b32 v1, 63, v0
    v_lshlrev_b32 v2, 4, v0
    v_mov_b64 v[4:5], 0
    v_mov_b64 v[6:7], 0
    s_and_b32 s6, s2, 7
    s_bfe_u32 s7, s2, 0x10003
    """)
    if stamps: a("s_and_b32 s74, s3, 0x3c0")
    a(f"""
    s_lshr_b32 s3, s3, 6
    ds_write_b128 v2, v[4:7]
    s_lshl1_add_u32 s4, s6, s7
    s_lshr_b32 s5, s2, 4
    s_lshr_b32 s7, s2, 3
    s_mov_b32 s39, 0x20000
    v_lshlrev_b32 v2, 4, v1
    s_sub_u32 s35, s3, 1
    s_cbranch_scc1 L_Qstub
    s_and_b32 s60, s35, 3
    s_lshl_b32 s56, s4, 8
    s_lshl2_add_u32 s57, s5, s60
    s_add_u32 s56, s56, s57
    s_add_u32 s56, s56, 192
    s_add_u32 s61, s60, s5
    s_and_b32 s61, s61, {3 if rot else 0}
    s_lshl2_add_u32 s56, s56, s61
    s_lshl_b32 s56, s56, 12
    s_mov_b32 s38, 0x4000000
    s_cmp_lt_u32 s35, 4
    s_cbranch_scc0 L_notK
    """)
    KR=16
    def kvload(i): return f"buffer_load_dwordx4 v[{KR+4*i}:{KR+4*i+3}], v2, s[36:39], s{56+(i>>2)} offen offset:{(i&3)*1024} nt"
    a(f"""
    s_setprio 2
    s_xor_b32 s57, s56, 4096
    s_waitcnt lgkmcnt(0)
    s_mov_b64 s[36:37], s[10:11]
    """)
    stK.at()
    for i in range(wk): a(kvload(i))
    a("s_branch L_Kbody")
    a("L_Qstub:\ns_setprio 3")
    if warm:
        a(f"""
        s_getpc_b64 s[44:45]
        L_pc:
        s_mov_b32 s46, L_codeend-L_pc
        s_mov_b32 s47, 0x20000
        v_lshlrev_b32 v5, 7, v1
        """)
        for i in range(warm):
            a(f"s_movk_i32 s48, {8192*i}\nbuffer_load_dword v{100+i}, v5, s[44:47], s48 offen")
    a(f"""
    v_lshrrev_b32 v3, 3, v1
    v_and_b32 v4, 7, v1
    v_lshlrev_b32 v127, 1, v1
    s_movk_i32 s42, 1152
    s_mov_b32 s43, 0x20000
    v_lshlrev_b32 v4, 4, v4
    v_lshl_or_b32 v5, v3, {13 if wqr else 17}, v4
    v_lshl_or_b32 v6, v3, 14, v4
    """)
    if qmap: a(f"""
    s_lshr_b32 s60, s6, 1
    s_and_b32 s61, s7, 3
    s_and_b32 s63, s6, 1
    s_lshr_b32 s45, s7, 2
    s_lshl3_add_u32 s63, s63, s45
    """)
    else: a(f"""
    s_lshr_b32 s60, s5, 2
    s_add_u32 s61, s5, {cbx}
    s_and_b32 s61, s61, 3
    s_mov_b32 s63, s4
    """)
    a(f"""
    s_mul_i32 s44, s60, {144*8192}
    s_lshl_b32 s45, s63, 9
    s_add_u32 s44, s44, s45
    s_lshl_b32 s45, s61, 7
    s_add_u32 s44, s44, s45
    """)
    WS=8192*8 if wqr else 8192
    for i in range(1,14): a(f"s_add_u32 s{44+i}, s44, {WS*i}")
    a(f"""
    s_add_u32 s58, s44, {WS*14}
    s_add_u32 s59, s44, {WS*15}
    s_mov_b32 s38, 4718592
    s_waitcnt lgkmcnt(0)
    s_mov_b64 s[40:41], s[8:9]
    s_mov_b64 s[36:37], s[14:15]
    """)
    stQ.at()
    a("""
    buffer_load_dwordx4 v[120:123], v2, s[40:43], 0 offen
    buffer_load_ushort v124, v127, s[40:43], 0 offen offset:1024
    """)
    def wqload(i):
        so=44+i if i<16 else 18+(i-16)
        return f"buffer_load_dwordx4 v[{16+4*i}:{16+4*i+3}], v{2 if i<16 else 0}, s[36:39], s{so} offen{wqf}"
    a(f"v_mov_b32 v2, v5\nv_mov_b32 v0, v6\ns_add_u32 s18, s44, {8192*128}\ns_add_u32 s19, s44, {8192*129}")
    if wqh: a("s_add_u32 s35, s14, s44\ns_bfe_u32 s35, s35, 0x30007")
    for i in range(wqw):
        if wqh and i==wqh: a("s_cmp_eq_u32 s35, 3\ns_cbranch_scc1 L_wqskip")
        a(wqload(i))
    if wqh: a("L_wqskip:")
    a(f"""
    s_load_dword s73, s[32:33], 0
    s_branch L_Qbody
    """)
    a(f"""
    L_notK:
    s_mov_b32 s43, 0x20000
    s_cmp_lt_u32 s3, 10
    s_cbranch_scc1 L_notV
    s_waitcnt lgkmcnt(0)
    s_mov_b64 s[36:37], s[12:13]
    """)
    a("s_buffer_load_dword s75, s[36:39], s56" if sw&1 else kvload(0))
    a("s_branch L_Vbody")
    T1=16; M1=40; M2=44; WOR=48; T2=72; AO=96; ACC=108; DM=120; MKW=124; CF=12; TM=96
    a(f"""
    L_notV:
    v_lshrrev_b32 v3, 3, v1
    v_and_b32 v4, 7, v1
    s_cmp_lt_u32 s3, 7
    s_cbranch_scc1 L_notW
    v_lshlrev_b32 v4, 4, v4
    v_lshrrev_b32 v12, 5, v1
    v_bfe_u32 v13, v1, 3, 1
    v_bfe_u32 v14, v1, 4, 1
    v_lshl_or_b32 v7, v12, 7, v4
    v_lshl_or_b32 v7, v13, 8, v7
    v_mov_b32 v15, {NULL}
    v_cmp_gt_u32 vcc, 0x180, v7
    s_sub_u32 s3, s3, 7
    s_mul_i32 s60, s3, 384
    v_cndmask_b32 v7, v15, v7, vcc
    v_mul_u32_u24 v6, 9216, v14
    v_mul_u32_u24 v8, 1152, v14
    v_mul_u32_u24 v5, {2*9216}, v3
    v_mul_u32_u24 v9, 2304, v3
    v_add_u32 v6, v6, v7
    v_add_u32 v8, v8, v7
    v_add_u32 v5, v5, v4
    v_add_u32 v9, v9, v4
    s_mul_i32 s56, s7, {18*9216}
    s_mul_i32 s57, s6, 1152
    s_add_u32 s56, s56, s57
    s_add_u32 s56, s56, s60
    s_add_u32 s57, s56, 9216
    s_add_u32 s59, s56, {16*9216}
    s_lshl_b32 s64, s6, 5
    s_add_u32 s62, s64, s7
    s_mul_i32 s64, s62, {18*1152}
    s_add_u32 s64, s64, s60
    s_add_u32 s66, s64, {16*1152}
    s_lshl_b32 s67, s4, 4
    s_add_u32 s67, s67, s5
    s_mul_i32 s67, s67, 18432
    s_add_u32 s67, s67, s60
    s_mov_b32 s38, 5308416
    s_mov_b32 s46, 5308416
    s_mov_b32 s47, 0x20000
    s_mov_b32 s50, 4718592
    s_mov_b32 s51, 0x20000
    s_waitcnt lgkmcnt(0)
    s_mov_b64 s[36:37], s[20:21]
    s_mov_b64 s[44:45], s[24:25]
    s_mov_b64 s[48:49], s[16:17]
    s_load_dword s73, s[32:33], 0
    """)
    def w1load(k): gi,c=divmod(k,3); r=T1+4*k; return f"buffer_load_dwordx4 v[{r}:{r+3}], v5, s[36:39], s{56+gi} offen offset:{128*c} nt"
    def w2load(k): gi,c=divmod(k,3); r=T2+4*k; return f"buffer_load_dwordx4 v[{r}:{r+3}], v9, s[44:47], s64 offen offset:{1152*gi+128*c} nt"
    def woload(k): gi,c=divmod(k,3); r=WOR+4*k; return f"buffer_load_dwordx4 v[{r}:{r+3}], v9, s[48:51], s67 offen offset:{1152*gi+128*c} nt"
    vw=VM()
    vw.issue("m1",f"buffer_load_dwordx4 v[{M1}:{M1+3}], v6, s[36:39], s59 offen nt")
    m2l=f"buffer_load_dwordx4 v[{M2}:{M2+3}], v{M2 if sw&2 else 8}, s[44:47], s66 offen nt"
    if sw&2: a(f"v_mov_b32 v{M2}, v8\ns_buffer_load_dword s75, s[44:47], s66\ns_buffer_load_dword s76, s[48:51], s67"); assert not wo0e
    else: vw.issue("m2",m2l)
    if sw&2: pass
    elif wo0e: vw.issue("wo0",woload(0))
    else: a("s_mov_b64 exec, 1"); vw.issue("wowarm",f"buffer_load_dword v{WOR}, off, s[48:51], s67 nt"); a("s_mov_b64 exec, -1")
    if not late:
        for i in range(ww1): vw.issue(f"a{i}",w1load(i))
    a("s_branch L_Wbody")
    a(f"""
    L_notW:
    s_cmp_eq_u32 s3, 6
    s_cbranch_scc1 L_Rbody
    s_setprio 3
    v_lshlrev_b32 v127, 1, v1
    s_movk_i32 s42, 1152
    s_waitcnt lgkmcnt(0)
    s_mov_b64 s[40:41], s[8:9]
    {"s_memrealtime s[82:83]" if stamps else "s_nop 0"}
    """)
    if not sx:
        a("""
        buffer_load_dwordx4 v[120:123], v2, s[40:43], 0 offen
        buffer_load_ushort v124, v127, s[40:43], 0 offen offset:1024
        """)
    a(f"""
    s_load_dword s73, s[32:33], 0
    v_mov_b32 v11, 0
    s_barrier
    s_mov_b64 s[40:41], s[32:33]
    s_mov_b32 s42, 0x10000000
    v_mov_b32 v125, {f32(1.0/576)}
    v_lshlrev_b32 v126, 5, v1
    v_lshlrev_b32 v127, 2, v1
    """)
    if sx:
        wait_flag(C_XN,1,8,11,f"ds_read_b128 v[98:101], v126 offset:{XN}\nds_read_b128 v[102:105], v126 offset:{XN+16}\nds_read_b32 v106, v127 offset:{XN+2048}")
        if stamps: a("s_memrealtime s[84:85]")
        a("s_branch L_S1")
    else:
        a("s_waitcnt vmcnt(0)\ns_branch L_LN0")
    a(f"""
    L_Kbody:
    s_xor_b32 s58, s56, 8192
    s_xor_b32 s59, s56, 12288
    s_lshl_b32 s61, s60, 2
    v_mov_b32 v10, s61
    v_mov_b32 v11, 1
    v_mov_b32 v6, 0
    s_barrier
    """)
    for i in range(wk,16):
        a(f"s_waitcnt vmcnt({wk-1})")
        a(kvload(i))
        if i==kh: a(f"s_mov_b64 exec, 1\nds_add_u32 v6, v11 offset:{KH}\ns_mov_b64 exec, -1")
        if i==kt: a(f"ds_write_b32 v10, v11 offset:{KT}")
    stK.at()
    a(f"""
    s_setprio 0
    v_and_b32 v7, 15, v1
    v_lshlrev_b32 v7, 4, v7
    v_lshrrev_b32 v14, 2, v1
    s_lshl_b32 s61, s60, 9
    v_lshl_add_u32 v14, v14, 5, s61
    v_and_b32 v15, 8, v1
    s_lshl_b32 s61, s60, 3
    v_lshl_add_u32 v15, v15, 2, s61
    s_mov_b32 s62, 0x11111111
    s_mov_b32 s63, 0x11111111
    """)
    wait_flag(C_Q,1,8,6,f"ds_read_b128 v[80:83], v7 offset:{LQ}\nds_read_b128 v[84:87], v7 offset:{LQ+256}")
    stK.at()
    a("s_setprio 1")
    SA=88; SB=104
    def step1(g):
        for i in range(4*g,4*g+4): a(f"v_add_f32_dpp v{SA+i}, v{SA+i}, v{SA+i} row_ror:8 row_mask:0xf bank_mask:0x3")
        for i in range(4*g,4*g+4): a(f"v_add_f32_dpp v{SA+i}, v{SB+i}, v{SB+i} row_ror:8 row_mask:0xf bank_mask:0xc")
    for g in range(4):
        if 4*g+3>15-wk: a(f"s_waitcnt vmcnt({12-4*g})")
        if g==3: stK.at()
        for c in range(4):
            for i in range(4*g,4*g+4):
                for (S,q) in ((SA,80),(SB,84)):
                    if c==0: a(f"v_dot2_f32_bf16 v{S+i}, v{KR+4*i}, v{q}, 0")
                    else: a(f"v_dot2c_f32_bf16 v{S+i}, v{KR+4*i+c}, v{q+c}")
            if c==0 and g>0: step1(g-1)
    step1(3)
    for r in range(8): a(f"v_add_f32_dpp v{SA+r}, v{SA+r}, v{SA+r} row_half_mirror row_mask:0xf bank_mask:0x5")
    for r in range(8): a(f"v_add_f32_dpp v{SA+r}, v{SA+8+r}, v{SA+8+r} row_half_mirror row_mask:0xf bank_mask:0xa")
    for pat in ("quad_perm:[1,0,3,2]","quad_perm:[2,3,0,1]"):
        for i in range(8): a(f"v_add_f32_dpp v{SA+i}, v{SA+i}, v{SA+i} {pat} {DPPM}")
    for i in range(8): a(f"v_cvt_pk_bf16_f32 v{SA+i}, 0, v{SA+i}")
    for i in range(8): a(f"v_mul_f32 v{SA+i}, 0x3db504f3, v{SA+i}")
    for i in range(8): a(f"v_cvt_pk_bf16_f32 v{SA+i}, 0, v{SA+i}")
    def rows(op,v,t):
        a(f"""
        v_{op}_f32_dpp v{v}, v{v}, v{v} row_half_mirror {DPPM}
        v_mov_b32 v{t}, v{v}
        v_permlane32_swap_b32 v{v}, v{t}
        v_{op}_f32 v{v}, v{v}, v{t}
        v_mov_b32 v{t}, v{v}
        v_permlane16_swap_b32 v{v}, v{t}
        v_{op}_f32 v{v}, v{v}, v{t}
        """)
    a(f"""
    v_max3_f32 v12, v{SA}, v{SA+1}, v{SA+2}
    v_max3_f32 v13, v{SA+3}, v{SA+4}, v{SA+5}
    v_max3_f32 v12, v12, v{SA+6}, v{SA+7}
    v_max_f32 v12, v12, v13
    """)
    rows("max",12,13)
    for i in range(8): a(f"v_sub_f32 v{SA+i}, v{SA+i}, v12")
    for i in range(8): a(f"v_mul_f32 v{SA+i}, {f32(LOG2E)}, v{SA+i}")
    for i in range(8): a(f"v_exp_f32 v{SA+i}, v{SA+i}")
    a(f"""
    v_add_f32 v13, v{SA}, v{SA+1}
    v_add_f32 v3, v{SA+2}, v{SA+3}
    v_add_f32 v4, v{SA+4}, v{SA+5}
    v_add_f32 v5, v{SA+6}, v{SA+7}
    v_add_f32 v13, v13, v3
    v_add_f32 v4, v4, v5
    v_add_f32 v13, v13, v4
    """)
    for i in range(8): a(f"v_cvt_pk_bf16_f32 v{SA+i}, v{SA+i}, v{SA+i}")
    rows("add",13,3)
    a(f"""
    s_mov_b64 exec, s[62:63]
    ds_write_b128 v14, v[{SA}:{SA+3}] offset:{PL}
    ds_write_b128 v14, v[{SA+4}:{SA+7}] offset:{PL+16}
    ds_write_b64 v15, v[12:13] offset:{ML}
    ds_write_b32 v10, v11 offset:{K_L}
    """)
    stK.at()
    stK.flush()
    a("s_endpgm")
    MK=112; AC=116; PR=80; AT=96
    a(f"""
    L_Vbody:
    s_xor_b32 s57, s56, 4096
    s_xor_b32 s58, s56, 8192
    s_xor_b32 s59, s56, 12288
    s_lshl_b32 s61, s60, 2
    v_mov_b32 v10, s61
    v_mov_b32 v11, 1
    v_mov_b32 v6, 0
    v_lshrrev_b32 v14, 3, v1
    s_lshl_b32 s61, s60, 9
    v_lshl_add_u32 v14, v14, 6, s61
    s_lshl_b32 s61, s60, 10
    v_add_u32 v15, s61, v2
    """)
    masks(MK,3)
    a("s_barrier")
    wait_flag(KT,1,8,10)
    a("s_setprio 2")
    stV.at()
    for i in range(0 if sw&1 else 1,16):
        if i>wv-(sw&1): a(f"s_waitcnt vmcnt({wv-1})")
        a(kvload(i))
        if i==vt: a(f"s_mov_b64 exec, 1\nds_add_u32 v6, v11 offset:{VT}\ns_mov_b64 exec, -1")
        if i==vq and qg=="vq": a(f"s_mov_b64 exec, 1\nds_add_u32 v6, v11 offset:{VQ}\ns_mov_b64 exec, -1")
        if i==vh and hg=="vh": a(f"s_mov_b64 exec, 1\nds_add_u32 v6, v11 offset:{VH}\ns_mov_b64 exec, -1")
    stV.at()
    wait_flag(K_L,1,8,10,"\n".join(f"ds_read_b128 v[{PR+4*i}:{PR+4*i+3}], v14 offset:{PL+16*i}" for i in range(4)))
    stV.at()
    nE=16-wv
    def aloc(t): return AT+4*(t&1) if t<nE else KR+4*(t-nE)
    for t in range(nE+1):
        if t<nE:
            for d in range(4): a(f"v_and_b32 v{aloc(t)+d}, v{PR+t}, v{MK+d}")
        if t>0: mfma(AC,aloc(t-1),KR+4*(t-1),t==1)
    for t in range(nE,16):
        for d in range(4): a(f"v_and_b32 v{aloc(t)+d}, v{PR+t}, v{MK+d}")
    a("s_setprio 3")
    for t in range(nE,16):
        a(f"s_waitcnt vmcnt({15-t})")
        if t==15: stV.at()
        mfma(AC,aloc(t),KR+4*t,False)
    a(f"ds_write_b128 v15, v[{AC}:{AC+3}] offset:{OP}\nds_write_b32 v10, v11 offset:{K_O}")
    stV.at()
    stV.flush()
    a("s_endpgm")

    a(f"""
    L_Qbody:
    s_barrier
    s_mul_i32 s62, s60, 576
    s_add_u32 s62, s62, {XN}
    v_lshl_add_u32 v7, v3, 6, s62
    v_lshl_add_u32 v8, v3, 3, s62
    v_and_b32 v11, 15, v1
    v_lshrrev_b32 v9, 4, v1
    v_lshlrev_b32 v11, 5, v11
    v_lshl_or_b32 v11, v9, 4, v11
    v_mov_b32 v10, 0xffffff00
    s_lshl_b32 s62, s63, 12
    s_lshl_b32 s63, s60, 10
    s_add_u32 s62, s62, s63
    s_lshl_b32 s63, s61, 8
    s_add_u32 s62, s62, s63
    s_add_u32 s62, s62, {QBOX}
    s_mov_b64 s[40:41], s[32:33]
    s_mov_b32 s42, 0x10000000
    s_mov_b32 s64, 0x00ff00ff
    s_mov_b32 s65, 0
    """)
    masks(12,4)
    xcc()
    a(f"""
    v_mov_b32 v125, {f32(1.0/576)}
    v_lshlrev_b32 v126, 5, v1
    v_lshlrev_b32 v127, 2, v1
    s_waitcnt vmcnt({wqw})
    """)
    if wqh: a(f"s_cmp_eq_u32 s35, 3\ns_cbranch_scc0 L_LN0\ns_waitcnt vmcnt({wqh})")
    for k in range(wqw,18): a(f"s_waitcnt vmcnt({wqw-1})\n"+wqload(k))
    a("L_LN0:")
    if stamps: a("s_memrealtime s[84:85]"); stQ.n=3; stS.n=3
    E=88; DS=98; T=107
    for d in range(4):
        a(f"v_lshlrev_b32 v{E+2*d}, 16, v{120+d}\nv_and_b32 v{E+2*d+1}, 0xffff0000, v{120+d}")
    a(f"v_lshlrev_b32 v{E+8}, 16, v124")
    a("L_LN:")
    def layernorm(src, dst, t):
        a(f"""
        v_add_f32 v{t}, v{src}, v{src+1}
        v_add_f32 v{t+1}, v{src+2}, v{src+3}
        v_add_f32 v{t+2}, v{src+4}, v{src+5}
        v_add_f32 v{t+3}, v{src+6}, v{src+7}
        v_add_f32 v{t}, v{t}, v{src+8}
        v_add_f32 v{t+1}, v{t+1}, v{t+2}
        v_add_f32 v{t}, v{t}, v{t+3}
        v_add_f32 v{t}, v{t}, v{t+1}
        """)
        wave_sum(t,66)
        a(f"v_mul_f32 v{t+1}, s66, v125")
        for i in range(9): a(f"v_sub_f32 v{t+2+i}, v{src+i}, v{t+1}")
        a(f"v_mul_f32 v{t}, v{t+2}, v{t+2}\nv_mul_f32 v{t+11}, v{t+3}, v{t+3}")
        for i in range(2,9):
            a(f"v_fmac_f32 v{t+(11 if i&1 else 0)}, v{t+2+i}, v{t+2+i}")
        a(f"v_add_f32 v{t}, v{t}, v{t+11}")
        a(f"v_cvt_pk_bf16_f32 v{t+1}, 0, v{t+1}")
        red=[f"v_add_f32_dpp v{t}, v{t}, v{t} row_ror:{r} {DPPM}" for r in (8,4,2,1)]
        red+=[f"v_add_f32_dpp v{t}, v{t}, v{t} row_bcast:15 row_mask:0xa bank_mask:0xf", f"v_add_f32_dpp v{t}, v{t}, v{t} row_bcast:31 row_mask:0xc bank_mask:0xf"]
        oth=[f"v_sub_f32 v{t+2+i}, v{src+i}, v{t+1}" for i in range(9)]+[f"v_cvt_pk_bf16_f32 v{t+2+i}, 0, v{t+2+i}" for i in range(9)]
        for k in range(6):
            a(red[k]); a(oth[2*k]); a(oth[2*k+1])
        a(f"v_readlane_b32 s67, v{t}, 63")
        a(oth[12]); a(oth[13])
        a(f"""
        v_mul_f32 v{t}, s67, v125
        v_cvt_pk_bf16_f32 v{t}, 0, v{t}
        v_add_f32 v{t}, {f32(1e-5)}, v{t}
        v_cvt_pk_bf16_f32 v{t}, 0, v{t}
        v_sqrt_f32 v{t}, v{t}
        """)
        a(oth[14]); a(oth[15])
        a(f"""
        v_cvt_pk_bf16_f32 v{t}, 0, v{t}
        v_rcp_f32 v{t+1}, v{t}
        """)
        a(oth[16]); a(oth[17])
        for i in range(9): a(f"v_mul_f32 v{dst+i}, v{t+2+i}, v{t+1}")
        for i in range(9): a(f"v_fma_f32 v{t+2+i}, -v{dst+i}, v{t}, v{t+2+i}")
        for i in range(9): a(f"v_fmac_f32 v{dst+i}, v{t+2+i}, v{t+1}")
        for i in range(9): a(f"v_cvt_pk_bf16_f32 v{dst+i}, v{dst+i}, v{dst+i}")
    layernorm(E,DS,T)
    a(f"""
    s_cmp_eq_u32 s3, 5
    s_cbranch_scc1 L_S1
    ds_write_b128 v126, v[{DS}:{DS+3}] offset:{XN}
    ds_write_b128 v126, v[{DS+4}:{DS+7}] offset:{XN+16}
    ds_write_b32 v127, v{DS+8} offset:{XN+2048}
    s_cmp_lg_u32 s3, 0
    s_cbranch_scc1 L_Sbody
    v_mov_b32 v107, 1
    ds_write_b32 v107, v107 offset:{C_XN-1}
    """)
    if wqh:
        a("s_cmp_eq_u32 s35, 3\ns_cbranch_scc0 L_wqdone")
        for i in range(wqh,18): a(wqload(i))
        a("L_wqdone:")
    for i in range(4): a(f"ds_read_b128 v[{88+4*i}:{91+4*i}], v7 offset:{16*i}")
    a("ds_read_b64 v[104:105], v8 offset:512\ns_waitcnt lgkmcnt(0)")
    tc=tagcode()
    for i in range(19):
        if i<18:
            for d in range(4): a(f"v_and_b32 v{106+4*(i&1)+d}, v{88+i}, v{12+d}")
        if i>0:
            k=i-1
            a(f"s_waitcnt vmcnt({17-k})")
            mfma(116,106+4*(k&1),16+4*k,k==0)
    for t in tc[:4]: a(t)
    for i in range(4): a(f"v_mov_b32 v{106+i}, v{116+i}")
    a(tc[4])
    for i in range(4): a(f"v_permlane32_swap_b32 v{116+i}, v{106+i}")
    a(tc[5])
    for i in range(4): a(f"v_add_f32_dpp v{116+i}, v{106+i}, v{116+i} row_ror:8 {DPPM}")
    a(tc[6]); a(tc[7])
    for i in range(4): a(f"v_add_u32 v{116+i}, 0x80, v{116+i}")
    for i in range(4): a(f"v_and_or_b32 v{116+i}, v{116+i}, v10, s{68+i}")
    a(f"""
    s_mov_b64 exec, s[64:65]
    buffer_store_dwordx4 v[116:119], v11, s[40:43], s62 offen{qst}
    s_mov_b64 exec, -1
    """)
    stQ.at()
    a(f"""
    s_setprio 0
    v_and_b32 v3, 15, v1
    v_lshrrev_b32 v4, 4, v1
    v_lshlrev_b32 v10, 6, v3
    {"v_lshlrev_b32 v10, 4, v1" if coo else "v_lshl_or_b32 v10, v4, 4, v10"}
    v_lshlrev_b32 v11, 4, v3
    v_bfe_u32 v3, v1, 3, 1
    v_lshlrev_b32 v4, 4, v4
    v_lshl_or_b32 v12, v3, 2, v4
    v_mov_b32 v60, 0
    v_mov_b32 v61, 1
    s_lshl_b32 s56, s4, 4
    s_add_u32 s56, s56, s5
    s_lshl_b32 s56, s56, 11
    s_add_u32 s56, s56, {H1BOX}
    s_mov_b64 s[8:9], -1
    v_not_b32 v16, s68
    """)
    if safe: a(f"v_mov_b32 v63, -1\ns_waitcnt vmcnt(0)\nds_write_b32 v60, v61 offset:{C_QS}"); assert so
    def statmath():
        a(f"v_max_f32_dpp v22, v20, v20 row_ror:8 {DPPM}")
        for r in (4,2,1): a(f"v_max_f32_dpp v22, v22, v22 row_ror:{r} {DPPM}")
        a(f"""
        v_sub_f32 v20, v20, v22
        v_mul_f32 v20, {f32(LOG2E)}, v20
        v_exp_f32 v20, v20
        v_mul_f32 v21, v21, v20
        """)
        for r in (8,4,2,1): a(f"v_add_f32_dpp v21, v21, v21 row_ror:{r} {DPPM}")
        a("v_rcp_f32 v21, v21")
    stl=lambda d: f"buffer_load_dwordx4 v[{d}:{d+3}], v11, s[40:43], s56 offen offset:1024{old}"
    ol=lambda d: f"buffer_load_dwordx4 v[{d}:{d+3}], v10, s[40:43], s56 offen{old}"
    def ogate():
        if wi is not None and og is None: wait_flag(C_WI,win_,8,60,cmp="gt")
        else: wait_flag(C_OP,1,8,60)
        a("s_setprio 3")
        stQ.at()
    if so:
        for s in range(2*ns1): a(f"v_not_b32 v{64+4*s}, s68")
        a("s_mov_b64 s[10:11], -1")
        if pw: a(stl(28).replace(" sc1","")+"\n"+ol(32).replace(" sc1",""))
        ogate()
        gather(2,ns1,64,20,5,8,lambda k,d: ol(d) if k else stl(d),ofew,L("od"),63,lambda: wait_flag(C_OS,1,8,60))
        stQ.at()
        statmath()
    else:
        for s in range(ns1): a(f"v_not_b32 v{32+4*s}, s68")
        if stg: wait_flag(VT,stg,8,60,cmp="gt")
        else: wait_flag(C_ST,1,8,60)
        stQ.at()
        gather(1,1,16,20,5,8,lambda k,d: stl(d),None,L("sd"))
        statmath()
        a("s_mov_b64 s[8:9], -1")
        stQ.at()
        ogate()
        gather(1,ns1,32,24,5,8,lambda k,d: ol(d),None,L("od"))
    a(f"""
    v_mul_f32 v24, v24, v20
    v_mul_f32 v26, v26, v20
    v_mul_f32 v25, v25, v20
    v_mul_f32 v27, v27, v20
    v_add_f32_dpp v24, v24, v24 row_ror:8 row_mask:0xf bank_mask:0x3
    v_add_f32_dpp v26, v26, v26 row_ror:8 row_mask:0xf bank_mask:0x3
    v_add_f32_dpp v24, v25, v25 row_ror:8 row_mask:0xf bank_mask:0xc
    v_add_f32_dpp v26, v27, v27 row_ror:8 row_mask:0xf bank_mask:0xc
    """)
    for pat in ("row_half_mirror","quad_perm:[1,0,3,2]","quad_perm:[2,3,0,1]"):
        a(f"v_add_f32_dpp v24, v24, v24 {pat} {DPPM}\nv_add_f32_dpp v26, v26, v26 {pat} {DPPM}")
    a(f"""
    v_mul_f32 v24, v24, v21
    v_mul_f32 v26, v26, v21
    v_cvt_pk_bf16_f32 v24, v24, v24
    v_cvt_pk_bf16_f32 v26, v26, v26
    ds_write2_b32 v12, v24, v26 offset0:{OC//4} offset1:{OC//4+2}
    ds_write_b32 v60, v61 offset:{C_COEF}
    """)
    stQ.at()
    stQ.flush()
    a("s_endpgm")
    a("L_S1:")
    for i in range(9): a(f"v_and_b32 v{E+i}, 0xffff0000, v{DS+i}")
    a(f"""
    v_add_u32 v126, {YL-XN}, v126
    v_add_u32 v127, {YL-XN}, v127
    s_mov_b32 s3, 2
    s_branch L_LN
    """)
    QD=112; QT=96
    a(f"""
    L_Sbody:
    v_mov_b32 v60, 0
    v_mov_b32 v61, 1
    ds_write_b32 v60, v61 offset:{C_Y}
    s_setprio 0
    v_and_b32 v16, 3, v1
    v_lshlrev_b32 v16, 2, v16
    v_lshlrev_b32 v62, 3, v1
    s_lshl_b32 s62, s4, 12
    s_add_u32 s62, s62, {QBOX}
    v_mov_b32 v59, 0xffffff00
    v_lshrrev_b32 v3, 5, v1
    v_lshlrev_b32 v19, 5, v3
    v_and_b32 v4, 7, v1
    v_lshl_or_b32 v4, v3, 3, v4
    v_lshlrev_b32 v18, 11, v4
    v_bfe_u32 v4, v1, 1, 3
    v_lshl_or_b32 v3, v3, 3, v4
    v_lshlrev_b32 v17, 11, v3
    v_and_b32 v3, 1, v1
    v_lshl_or_b32 v17, v3, {9 if coo else 5}, v17
    v_bfe_u32 v3, v1, 4, 1
    v_lshl_or_b32 v17, v3, {8 if coo else 4}, v17
    s_lshl_b32 s56, s4, 15
    s_add_u32 s56, s56, {H1BOX}
    s_lshl_b32 s57, s5, {4 if coo else 6}
    s_add_u32 s57, s57, s56
    s_lshl_b32 s66, s5, 4
    s_add_u32 s66, s66, s56
    s_movk_i32 s64, 0xff
    s_movk_i32 s65, 0xff
    s_mov_b64 s[8:9], -1
    s_mov_b64 s[10:11], -1
    s_mov_b64 s[12:13], -1
    s_mov_b64 s[14:15], -1
    s_waitcnt lgkmcnt(0)
    """)
    xcc(63)
    for t in tagcode(): a(t)
    for k in range(4): a(f"v_not_b32 v{QD+4*k}, s68")
    if pd&2: a(f"""
    buffer_store_dwordx4 v[{QD}:{QD+3}], v17, s[40:43], s57 offen
    s_mov_b64 exec, s[64:65]
    buffer_store_dwordx4 v[{QD}:{QD+3}], v18, s[40:43], s66 offen offset:1024
    s_mov_b64 exec, -1
    """)
    wait_flag(dict(kh=KH,vt=VT,vq=VQ)[qg],khn,8,60,cmp="gt")
    stS.at()
    gather(4,1,QD,QT,5,8,lambda k,d: f"buffer_load_dwordx4 v[{d}:{d+3}], v2, s[40:43], s62 offen offset:{1024*k}{qld}",None,L("qd"),63,lambda: wait_flag(C_QS,1,8,60))
    a(f"""
    v_pk_add_f32 v[{QT}:{QT+1}], v[{QT}:{QT+1}], v[{QT+4}:{QT+5}]
    v_pk_add_f32 v[{QT+2}:{QT+3}], v[{QT+2}:{QT+3}], v[{QT+6}:{QT+7}]
    v_pk_add_f32 v[{QT+8}:{QT+9}], v[{QT+8}:{QT+9}], v[{QT+12}:{QT+13}]
    v_pk_add_f32 v[{QT+10}:{QT+11}], v[{QT+10}:{QT+11}], v[{QT+14}:{QT+15}]
    v_pk_add_f32 v[{QT}:{QT+1}], v[{QT}:{QT+1}], v[{QT+8}:{QT+9}]
    v_pk_add_f32 v[{QT+2}:{QT+3}], v[{QT+2}:{QT+3}], v[{QT+10}:{QT+11}]
    v_cvt_pk_bf16_f32 v4, v{QT}, v{QT+1}
    v_cvt_pk_bf16_f32 v5, v{QT+2}, v{QT+3}
    ds_write_b64 v62, v[4:5] offset:{LQ}
    ds_write_b32 v60, v61 offset:{C_Q}
    """)
    stS.at()
    wait_flag(K_L,1,8,16,f"ds_read_b128 v[20:23], v19 offset:{ML}\nds_read_b128 v[24:27], v19 offset:{ML+16}")
    a(f"""
    v_max3_f32 v4, v20, v22, v24
    v_max_f32 v4, v4, v26
    """)
    for k in range(4): a(f"v_sub_f32 v{28+k}, v{20+2*k}, v4")
    for k in range(4): a(f"v_mul_f32 v{28+k}, {f32(LOG2E)}, v{28+k}")
    for k in range(4): a(f"v_exp_f32 v{28+k}, v{28+k}")
    a(f"""
    v_mul_f32 v5, v21, v28
    v_fmac_f32 v5, v23, v29
    v_fmac_f32 v5, v25, v30
    v_fmac_f32 v5, v27, v31
    v_and_or_b32 v6, v4, v59, s70
    v_and_or_b32 v4, v4, v59, s68
    v_and_or_b32 v7, v5, v59, s71
    v_and_or_b32 v5, v5, v59, s69
    s_mov_b64 exec, s[64:65]
    buffer_store_dwordx4 v[4:7], v18, s[40:43], s66 offen offset:1024{h1st}
    s_mov_b64 exec, -1
    ds_write_b32 v60, v61 offset:{C_ST}
    s_setprio 3
    """)
    stS.at()
    wait_flag(K_O,1,8,16,"\n".join(f"ds_read_b128 v[{32+4*w}:{35+4*w}], v2 offset:{OP+1024*w}" for w in range(4)))
    for r in range(4): a(f"v_mul_f32 v{32+r}, v{32+r}, v28")
    for w in range(1,4):
        for r in range(4): a(f"v_fmac_f32 v{32+r}, v{32+4*w+r}, v{28+w}")
    for r in range(4): a(f"v_and_or_b32 v{32+r}, v{32+r}, v59, s{68+r}")
    a(f"buffer_store_dwordx4 v[32:35], v17, s[40:43], s57 offen{h1st}\nds_write_b32 v60, v61 offset:{C_OP}")
    if dual:
        a(f"""
        s_lshl_b32 s56, s4, 4
        s_add_u32 s56, s56, s5
        s_mul_i32 s56, s56, 1152
        s_add_u32 s56, s56, {H1B}
        v_lshrrev_b32 v3, 1, v19
        buffer_store_dwordx4 v[32:35], v2, s[40:43], s56 offen sc1
        s_mov_b32 s64, 1
        s_mov_b32 s65, 1
        s_mov_b64 exec, s[64:65]
        buffer_store_dwordx4 v[4:7], v3, s[40:43], s56 offen offset:1024 sc1
        s_mov_b64 exec, -1
        """)
    stS.at()
    if safe: a(f"s_waitcnt vmcnt(0)\nds_write_b32 v60, v61 offset:{C_OS}")
    stS.flush()
    a("s_endpgm")

    a(f"""
    L_Wbody:
    s_barrier
    s_mul_i32 s61, s7, 72
    s_add_u32 s61, s61, {YL}
    v_lshl_add_u32 v6, v3, 3, s61
    v_lshl_add_u32 v7, v14, 2, s61
    v_add_u32 v7, 64, v7
    v_lshlrev_b32 v11, 1, v4
    v_lshl_or_b32 v11, v14, 4, v11
    v_lshl_or_b32 v11, v12, 8, v11
    v_lshl_or_b32 v11, v13, 9, v11
    v_cmp_gt_u32 vcc, 0x300, v11
    v_mov_b32 v8, 0
    v_mov_b32 v10, 1
    v_cndmask_b32 v11, v15, v11, vcc
    v_cmp_eq_u32 vcc, v12, v13
    v_mov_b32 v2, {ZERO}
    s_and_b32 s61, s7, 1
    s_lshl_b32 s61, s61, 3
    s_add_u32 s61, s61, {HC}
    v_cndmask_b32 v7, v2, v7, vcc
    v_lshl_add_u32 v0, v3, 3, s61
    v_lshlrev_b32 v4, 3, v3
    v_lshl_add_u32 v3, v14, 2, s61
    v_add_u32 v3, 64, v3
    v_cndmask_b32 v3, v2, v3, vcc
    s_mul_i32 s62, s62, 2304
    s_lshl_b32 s63, s60, 1
    s_add_u32 s62, s62, s63
    s_add_u32 s62, s62, {HBOX}
    s_mul_i32 s58, s2, 2304
    s_add_u32 s58, s58, s63
    s_add_u32 s58, s58, {H2BOX}
    s_mov_b64 s[40:41], s[32:33]
    s_mov_b32 s42, 0x10000000
    v_mov_b32 v15, 0xffffff00
    """)
    if hier: a(f"s_add_u32 s58, s62, {H2BOX-HBOX}"); assert safe and rep==1 and not h2m
    if h2m: a(f"""
    s_lshl_b32 s58, s6, 5
    s_add_u32 s58, s58, s7
    s_lshl_b32 s58, s58, 4
    s_mul_i32 s63, s3, {48*4096}
    s_add_u32 s58, s58, s63
    s_add_u32 s58, s58, {H2BOX}
    """)
    masks(MKW,TM)
    xcc()
    def abuild(n):
        for gi in range(n):
            for d in range(4): a(f"v_and_b32 v{AO+4*gi+d}, v{CF+gi}, v{MKW+d}")
    def merge_pub(so, cnt):
        X0,X1,X2=ACC,ACC+4,ACC+8
        for i in range(4): a(f"v_permlane32_swap_b32 v{X0+i}, v{X1+i}")
        for i in range(4): a(f"v_add_f32_dpp v{X0+i}, v{X1+i}, v{X0+i} row_ror:8 row_mask:0xf bank_mask:0x3")
        if hier and so==58: a("s_cmp_lg_u32 s59, 1")
        for i in range(4): a(f"v_mov_b32 v{TM+i}, v{X2+i}")
        for i in range(4): a(f"v_permlane32_swap_b32 v{X2+i}, v{TM+i}")
        for i in range(4): a(f"v_add_f32_dpp v{X0+i}, v{X2+i}, v{TM+i} row_ror:8 row_mask:0xf bank_mask:0xc")
        for i in range(4): a(f"v_add_f32 v{X0+i}, v{X0+i}, v{DM+i}")
        for i in range(4): a(f"v_and_or_b32 v{X0+i}, v{X0+i}, v15, s{68+i}")
        if hier and so==58:
            a(f"s_cbranch_scc1 L_pubslow\nbuffer_store_dwordx4 v[{X0}:{X0+3}], v11, s[40:43], s58 offen\ns_branch L_pubdone\nL_pubslow:")
        vw.issue("st"+str(so),f"buffer_store_dwordx4 v[{X0}:{X0+3}], v11, s[40:43], s{so} offen{hst if so==62 else h2st}")
        if hier and so==58: a("L_pubdone:")
        if so==58:
            for r in range(1,rep): a(f"s_add_u32 s58, s58, 0x90000\nbuffer_store_dwordx4 v[{X0}:{X0+3}], v11, s[40:43], s58 offen sc1")
        if h2m and so==62: a("v_lshlrev_b32 v2, 8, v11\ns_nop 0\nv_max_u32 v11, v11, v2")
        if pd&1 and so==62:
            vw.issue("pd",f"buffer_store_dwordx4 v[{X0}:{X0+3}], v11, s[40:43], s58 offen"); a("s_xor_b32 s69, s69, 0x80"); assert hier
        if safe and so==62: a("s_xor_b32 s68, s68, s0"); vw.wait("st62"); assert not late and hg
        a(f"s_mov_b64 exec, 1\nds_add_u32 v8, v10 offset:{cnt}\ns_mov_b64 exec, -1")
    def stream(seq, win, on_arrive):
        tags=[t for t,_ in seq]
        n=0; arrived=0; bonus=0
        while arrived<len(seq):
            while n<len(seq) and n-arrived<win+bonus:
                vw.issue(*seq[n]); n+=1
            if n==len(seq) and not any(on_arrive(t,True) for t in tags[arrived:]): break
            t=tags[arrived]
            vw.wait(t); arrived+=1
            if on_arrive(t,True)==2: bonus=xtra
            while n<len(seq) and n-arrived<win+bonus:
                vw.issue(*seq[n]); n+=1
            on_arrive(t,False)
    def w1_arrive(t,query):
        if not t.startswith("a"): return 0
        k=int(t[1:])
        if query: return 2 if k==5 else 1
        gi,c=divmod(k,3)
        mfma(ACC+4*c,AO+4*gi,T1+4*k,gi==0)
        if k==5:
            merge_pub(62,C_HP); stW.at()
    w1seq=[(f"a{k}",w1load(k)) for k in range(6)]
    woseq=[(f"wo{k}",woload(k)) for k in range(1 if wo0e else 0,6)]
    w2seq=([("m2",m2l)] if sw&2 else [])+[(f"b{k}",w2load(k)) for k in range(6)]
    def ywait():
        wait_flag(C_Y,1,2,8,f"ds_read_b64 v[{CF}:{CF+1}], v6\nds_read_b32 v{CF+2}, v7")
        for t in tagcode(): a(t)
        abuild(3)
        vw.wait("m1")
        mfma(DM,AO+8,M1,True)
    def gatewait():
        a("s_setprio 0")
        wait_flag(VT,gate,2,8,cmp="gt")
        a("s_setprio 2")
        stW.at()
    def wo_part(first):
        wait_flag(C_COEF,1,2,8,f"ds_read_b64 v[{CF}:{CF+1}], v4 offset:{OC}")
        stW.at()
        abuild(2)
        for k in range(6):
            gi,c=divmod(k,3)
            vw.wait(f"wo{k}")
            mfma(ACC+4*c,AO+4*gi,WOR+4*k,first and gi==0)
    def w2_part(first):
        wait_flag(C_H,0,2,8,f"ds_read_b64 v[{CF}:{CF+1}], v0\nds_read_b32 v{CF+2}, v3",cmp="eq")
        a("v_readfirstlane_b32 s59, v2")
        stW.at()
        abuild(3)
        vw.wait("m2")
        mfma(DM,AO+8,M2,True)
        for k in range(6):
            gi,c=divmod(k,3)
            vw.wait(f"b{k}")
            if k==5: stW.at()
            mfma(ACC+4*c,AO+4*gi,T2+4*k,first and gi==0)
    if late:
        ywait()
        gatewait()
        stream(w1seq+woseq+w2seq, ww, w1_arrive)
        stW.at()
        a("s_setprio 3")
        wo_part(True); w2_part(False)
    else:
        for k in range(6-ww1):
            vw.wait(f"a{k}")
            vw.issue(*w1seq[k+ww1])
        ywait()
        for k in range(6):
            vw.wait(f"a{k}")
            w1_arrive(f"a{k}",False)
        gatewait()
        stream(w2seq+woseq, ww, lambda t,q: 0)
        stW.at()
        a("s_setprio 3")
        w2_part(True); wo_part(False)
    merge_pub(58,C_PUB)
    stW.at()
    stW.flush()
    a("s_endpgm")

    F=16; D=32; TT=D+16*ns
    a(f"""
    L_Rbody:
    s_mul_i32 s64, s7, 9
    s_lshr_b32 s64, s64, 1
    s_mul_i32 s66, s6, 1152
    s_lshl3_add_u32 s58, s64, s66
    s_mul_i32 s56, s6, {32*2304}
    s_lshl4_add_u32 s56, s64, s56
    s_add_u32 s56, s56, {HBOX}
    s_add_u32 s57, s56, {8*2304}
    s_add_u32 s60, s56, {16*2304}
    s_add_u32 s61, s56, {24*2304}
    v_mul_u32_u24 v5, 2304, v4
    v_lshl_add_u32 v5, v3, 4, v5
    v_bfe_u32 v6, v1, 2, 1
    v_and_b32 v7, 2, v1
    v_or_b32 v6, v6, v7
    v_lshl_or_b32 v6, v3, 2, v6
    v_lshlrev_b32 v7, 2, v6
    v_lshlrev_b32 v6, 1, v6
    s_mul_i32 s64, s6, 18
    s_add_u32 s64, s64, s7
    v_lshrrev_b32 v8, 4, v1
    v_and_b32 v9, 1, v8
    v_lshrrev_b32 v8, 1, v8
    v_lshl_or_b32 v8, v9, 1, v8
    v_lshlrev_b32 v8, 1, v8
    {"v_lshl_or_b32 v8, v4, 3, v8"+chr(10)+"s_lshl_b32 s59, s7, 6" if hier else "s_lshl_b32 s59, s64, 3"}
    s_movk_i32 s46, 9216
    s_mov_b32 s47, 0x20000
    s_movk_i32 s50, 1152
    s_mov_b32 s51, 0x20000
    s_movk_i32 s54, 1152
    s_mov_b32 s55, 0x20000
    s_movk_i32 s38, 1152
    s_mov_b32 s42, 0x10000000
    s_waitcnt lgkmcnt(0)
    s_load_dword s73, s[32:33], 0
    s_mov_b64 s[44:45], s[22:23]
    s_mov_b64 s[48:49], s[8:9]
    s_mov_b64 s[52:53], s[26:27]
    s_mov_b64 s[36:37], s[28:29]
    s_mov_b64 s[40:41], s[32:33]
    """)
    rl="""
    buffer_load_ushort v9, v6, s[44:47], s58 offen
    buffer_load_ushort v10, v8, s[48:51], s59 offen
    buffer_load_ushort v11, v8, s[52:55], s59 offen
    """
    if sw&4: a("s_buffer_load_dword s75, s[44:47], 0\ns_buffer_load_dword s76, s[52:55], 0\ns_buffer_load_dword s77, s[36:39], 0")
    else: a(rl+"buffer_load_ushort v12, v8, s[36:39], s59 offen sc1")
    if tw:
        a(f"""
        s_lshl_b32 s62, s4, 4
        s_add_u32 s62, s62, s5
        s_lshl_b32 s62, s62, 11
        s_add_u32 s62, s62, {H1BOX}
        v_lshlrev_b32 v13, 4, v1
        """)
        if tw==1:
            a(f"""
            s_mov_b64 exec, 1
            buffer_load_dword v14, off, s[40:43], s62 offset:1536 sc1
            buffer_load_dword v15, off, s[40:43], s56 sc1
            s_mov_b64 exec, -1
            """)
        else:
            a(f"""
            buffer_load_dwordx4 v[16:19], v13, s[40:43], s62 offen
            s_mov_b64 exec, 0xffff
            buffer_load_dwordx4 v[20:23], v13, s[40:43], s62 offen offset:1024
            s_mov_b64 exec, -1
            """)
        a("s_waitcnt vmcnt(0)" if False else "s_nop 0")
    a(f"""
    s_barrier
    s_mov_b32 s62, 0xcccccccc
    s_mov_b32 s63, 0xcccccccc
    s_mov_b32 s65, 0
    s_movk_i32 s66, {hfew}
    s_mov_b32 s8, -1
    s_movk_i32 s9, 0xff
    s_waitcnt lgkmcnt(0)
    """)
    xcc(TT+4)
    for t in tagcode(): a(t)
    if sw&4:
        a("v_mov_b32 v14, 0")
        wait_flag(KH,khn,11,14,cmp="gt")
        a(rl)
    c1=-2*0.7978845608028654*LOG2E; c2=c1*0.044715
    a(f"""
    v_mov_b32 v{TT+2}, {f32(c1)}
    v_mov_b32 v{TT+3}, {f32(c2)}
    s_waitcnt vmcnt(0)
    v_mov_b32 v14, 0
    v_mov_b32 v15, 1
    v_lshlrev_b32 v9, 16, v9
    v_lshlrev_b32 v10, 16, v10
    v_lshlrev_b32 v11, 16, v11
    v_add_f32 v10, v10, v11
    v_mov_b32 v12, s72
    v_mov_b32 v13, {dict(vh=VH,vt=VT,kh=KH)[hg] if hg else C_HP if wi is None else C_WI}
    s_mov_b32 s67, {4 if hg else 3}
    s_movk_i32 s58, {lim1}
    s_mov_b32 s35, 0
    L_Rgather:
    v_add_u32 v{TT+5}, s35, v5
    v_add_u32 v{TT+6}, s35, v{TT+5}
    v_add_u32 v{TT+7}, s35, v{TT+6}
    s_mov_b64 s[10:11], s[8:9]
    s_mov_b64 s[12:13], s[8:9]
    s_mov_b64 s[14:15], s[8:9]
    """)
    for k in range(4*ns): a(f"v_not_b32 v{D+4*k}, s68")
    wait_flag(0,"s67",11,13,cmp="gt")
    a("s_setprio 3")
    if stamps: a("s_memrealtime s[82:83]")
    SO=(56,57,60,61)
    gather(4,ns,D,F,TT,8,lambda k,d: f"buffer_load_dwordx4 v[{d}:{d+3}], v5, s[40:43], s{SO[k]} offen{h2ld}","s66",L("gd"),TT+4,lambda: (wait_flag(C_HP,3,11,14,cmp="gt"),a("v_mov_b32 v15, 2")),"s58")
    a(f"""
    v_pk_add_f32 v[{F}:{F+1}], v[{F}:{F+1}], v[{F+4}:{F+5}]
    v_pk_add_f32 v[{F+8}:{F+9}], v[{F+8}:{F+9}], v[{F+12}:{F+13}]
    v_pk_add_f32 v[{F+2}:{F+3}], v[{F+2}:{F+3}], v[{F+6}:{F+7}]
    v_pk_add_f32 v[{F+10}:{F+11}], v[{F+10}:{F+11}], v[{F+14}:{F+15}]
    v_pk_add_f32 v[{F}:{F+1}], v[{F}:{F+1}], v[{F+8}:{F+9}]
    v_pk_add_f32 v[{F+2}:{F+3}], v[{F+2}:{F+3}], v[{F+10}:{F+11}]
    s_cmp_lg_u32 s65, 0
    """)
    if not hier or co1: a("s_cbranch_scc1 L_Rfinal")
    if stamps and not hier: a("s_memrealtime s[84:85]")
    a(f"""
    v_add_f32_dpp v{F}, v{F}, v{F} row_half_mirror row_mask:0xf bank_mask:0x5
    v_add_f32_dpp v{F+2}, v{F+2}, v{F+2} row_half_mirror row_mask:0xf bank_mask:0x5
    v_add_f32_dpp v{F}, v{F+1}, v{F+1} row_half_mirror row_mask:0xf bank_mask:0xa
    v_add_f32_dpp v{F+2}, v{F+3}, v{F+3} row_half_mirror row_mask:0xf bank_mask:0xa
    v_add_f32_dpp v{F}, v{F}, v{F} quad_perm:[2,3,0,1] {DPPM}
    v_add_f32_dpp v{F+2}, v{F+2}, v{F+2} quad_perm:[2,3,0,1] {DPPM}
    v_cndmask_b32 v{F}, v{F}, v{F+2}, s[62:63]
    v_add_f32_dpp v{F}, v{F}, v{F} quad_perm:[1,0,3,2] {DPPM}
    {"s_cbranch_scc1 L_Rst1" if hier and not co1 else "s_nop 0"}
    {"s_memrealtime s[84:85]" if stamps and hier else "s_nop 0"}
    v_cvt_pk_bf16_f32 v{F}, 0, v{F}
    v_add_f32 v{F}, v{F}, v9
    v_cvt_pk_bf16_f32 v{F}, 0, v{F}
    v_mul_f32 v{F+1}, v{F}, v{F}
    v_fma_f32 v{F+1}, v{F+1}, v{TT+3}, v{TT+2}
    v_mul_f32 v{F+1}, v{F+1}, v{F}
    v_exp_f32 v{F+1}, v{F+1}
    v_add_f32 v{F+1}, 1.0, v{F+1}
    v_rcp_f32 v{F+1}, v{F+1}
    s_mov_b32 exec_hi, 0xff
    v_mul_f32 v{F}, v{F}, v{F+1}
    v_cvt_pk_bf16_f32 v{F}, v{F}, v{F}
    ds_write_b32 v7, v{F} offset:{HC}
    ds_write_b32 v14, v15 offset:{C_H}
    s_mov_b64 exec, -1
    """)
    if stamps: a("s_memrealtime s[86:87]\ns_waitcnt lgkmcnt(0)\ns_mov_b64 s[88:89], s[82:83]")
    a(f"""
    s_cmpk_lt_u32 s2, {NRED}
    s_cbranch_scc0 L_Rfin
    s_setprio 0
    """)
    if hier: a(f"""
    s_mul_i32 s56, s6, {32*2304}
    s_lshl_b32 s57, s7, 7
    s_add_u32 s56, s56, s57
    s_add_u32 s56, s56, {H2BOX}
    s_add_u32 s57, s56, {8*2304}
    s_add_u32 s60, s56, {16*2304}
    s_add_u32 s61, s56, {24*2304}
    s_lshl_b32 s44, s7, 10
    s_add_u32 s44, s44, {H3BOX}
    s_lshl_b32 s45, s6, 7
    s_add_u32 s45, s45, s44
    s_mov_b32 s46, 0x55555555
    s_mov_b32 s47, 0x55555555
    s_mov_b32 s48, 0x00ff00ff
    s_mov_b32 s49, 0x00ff00ff
    s_and_b32 s50, s7, 7
    {"v_lshlrev_b32 v7, 1, v8"+chr(10)+"v_mul_u32_u24 v5, 2304, v3"+chr(10)+"v_lshl_add_u32 v5, v4, 4, v5"+chr(10)+"s_mov_b64 s[46:47], s[48:49]" if co1 else "s_nop 0"}
    v_lshlrev_b32 v9, 1, v7
    v_bfe_u32 v{TT+1}, v12, v9, 8
    v_mov_b32 v9, 0xffffff00
    s_mov_b32 s65, 1
    s_movk_i32 s66, {h2few}
    s_mov_b64 s[8:9], -1
    v_mov_b32 v13, {C_PUB}
    s_mov_b32 s67, 3
    s_movk_i32 s58, {lim_g}
    s_xor_b32 s68, s68, s0
    s_xor_b32 s69, s69, {0x80 if pd&1 else 0}
    s_mov_b32 s1, 0
    v_mov_b32 v{TT+4}, -1
    {"s_mov_b64 exec, 0"+chr(10)+"s_cmp_lg_u32 s65, s65"+chr(10)+"s_cbranch_scc0 L_Rfinal"+chr(10)+"L_Rdry:"+chr(10)+"s_mov_b64 exec, -1" if dry else "s_nop 0"}
    s_waitcnt vmcnt(0)
    s_branch L_Rgather
    L_Rst1:
    v_and_or_b32 v{F}, v{F}, v9, v{TT+1}
    s_mov_b64 exec, s[46:47]
    buffer_store_dword v{F}, v7, s[40:43], s45 offen sc1
    s_mov_b64 exec, -1
    {"s_memrealtime s[92:93]" if stamps else "s_nop 0"}
    s_cmp_lg_u32 s50, s6
    s_cbranch_scc1 L_Rfin3
    s_mov_b64 s[8:9], -1
    s_mov_b64 s[62:63], s[48:49]
    s_xor_b32 s69, s69, {0x80 if pd&1 else 0}
    s_mov_b32 s1, 0
    """)
    if hier:
        l3=lambda k,d: f"buffer_load_dwordx4 v[{d}:{d+3}], v2, s[40:43], s44 offen sc1"
        for q in range(ns3): a(l3(0,104+4*q))
        gather(1,ns3,104,F,TT,8,l3,None,L("fd"),TT+4,lambda: 0,lim_g)
        if co1: a("s_cmp_lg_u32 s65, s65")
        a("s_branch L_Rfinal")
    a(f"""
    s_lshl_b32 s56, s64, {12 if h2m else 4}
    s_add_u32 s56, s56, {H2BOX}
    s_add_u32 s57, s56, {1024 if h2m else 64*2304}
    s_add_u32 s60, s56, {2048 if h2m else 128*2304}
    s_add_u32 s61, s56, {3072 if h2m else 192*2304}
    s_mov_b32 s35, 0x90000
    s_mov_b32 s62, 0x00010001
    s_mov_b32 s63, 0x00010001
    s_mov_b32 s65, 1
    s_movk_i32 s66, {h2few}
    s_mov_b64 s[8:9], -1
    v_mul_u32_u24 v5, {16 if h2m else 2304}, v1
    v_mov_b32 v13, {dict(pub=C_PUB,coef=C_COEF,op=C_OP)[h2g]}
    s_mov_b32 s67, {3 if h2g=='pub' else 1}
    s_movk_i32 s58, {lim_g}
    {"s_xor_b32 s68, s68, s0"+chr(10)+"s_mov_b32 s1, 0"+chr(10)+f"v_mov_b32 v{TT+4}, -1" if safe else "s_nop 0"}
    s_waitcnt vmcnt(0)
    s_branch L_Rgather
    L_Rfinal:
    v_permlane32_swap_b32 v{F}, v{F+1}
    v_permlane32_swap_b32 v{F+2}, v{F+3}
    v_add_f32 v{F}, v{F}, v{F+1}
    v_add_f32 v{F+2}, v{F+2}, v{F+3}
    v_permlane16_swap_b32 v{F}, v{F+2}
    v_add_f32 v{F}, v{F}, v{F+2}
    """)
    for r in ((8,) if hier else (8,4,2,1)): a(f"v_add_f32_dpp v{F}, v{F}, v{F} row_ror:{r} {DPPM}")
    if co1: a("s_cbranch_scc1 L_Rst1")
    a(f"""
    v_add_f32 v{F}, v{F}, v10
    v_cvt_pk_bf16_f32 v{F}, v{F}, v{F}
    {"s_cbranch_execz L_Rdry" if dry else "s_nop 0"}
    s_mov_b64 exec, s[62:63]
    buffer_store_short v{F}, v8, s[36:39], s59 offen{' sc1' if outsc1 else ''}
    s_cmp_lg_u32 s2, 0
    s_cbranch_scc1 L_Rfin2
    s_mov_b64 exec, 1
    buffer_store_dword v12, off, s[40:43], 0 sc1
    L_Rfin2:
    """)
    if stamps: a("s_memrealtime s[90:91]")
    stR.flush(7 if hier else 6)
    if hier:
        a("s_endpgm\nL_Rfin3:")
        if stamps: a("s_mov_b64 s[90:91], 0")
        stR.flush(7)
    a("s_endpgm\nL_Rfin:")
    stR.flush(5)
    a("""
    L_end:
    s_endpgm
    L_codeend:
    """)
    t0=a.text()
    if hier:
        i=t0.index("s_branch L_Rfinal"); j=t0.index("L_Rfinal:"); t0=t0[:i]+"\n"+t0[j:]
    text,n=hazard.fix(t0)
    src=wrap(text,256,NW*64,LDS_SIZE,128,sgpr=96)
    open(name+".s","w").write(src); build(name+".s",name+".co")
    print(name,"nops inserted",n)
    return f"echo == {name}; timeout 60 ./bench {name}.co {KN} 256 {NW*64} {LDS_SIZE} 48 {16 if stamps else 0} 3 1"

def batch(specs, sh="run5.sh", filt=None, env=""):
    cmds=["cd dev"]; names=[]
    for n,k in specs:
        c=gen(n,**k)
        if env and k.get("stamps"): c=c.replace("timeout",env+" timeout")
        if filt and k.get("stamps"): c+=f" | grep -v -E '{filt}'"
        cmds.append(c); names.append(n)
    open(sh,"w").write("\n".join(cmds)+"\n")
    print('["dev/bench","dev/thrash.co","dev/%s",'%sh+",".join(f'"dev/{n}.co"' for n in names)+"]")

if __name__=="__main__":
    F="dbg|thrash|seed|w(2|3|8|9|11|12) ?\\."
    batch([("k5_a",dict(stamps=True,wi="b5",stg=4)),("k5_b",dict(stamps=True,wi="b2",stg=4)),("k5_c",dict(stamps=True,wi="b5",stg=4,ww=5,vt=14)),("k5_d",dict(stamps=True,wi="b5",stg=4,wk=5,wv=5,ww=7))],filt=F)
```

```python
import gen5
E=dict(late=False,hg="vt",wo0e=False,wi="wo5",qg="vq",so=True,vq=4,qmap=0,qst="",h1st="",hst="",og="op",ns1=2,safe=True,hier=True,co1=True,h2few=64,coo=True)
gen5.gen("k5_dryf",**dict(E,dry=True,fake=True))
```
